```python
import torch

def _softmax(x, axis=-1):
    return torch.softmax(x, dim=axis)

def _gelu(x):
    return torch.nn.functional.gelu(x, approximate='tanh')

def _silu(x):
    return torch.nn.functional.silu(x)

def _sigmoid(x):
    return torch.sigmoid(x)

def _layernorm(x, axis=-1, eps=1e-05):
    m = x.mean(dim=axis, keepdim=True)
    v = x.var(dim=axis, keepdim=True, unbiased=False)
    return (x - m) / torch.sqrt(v + eps)

def _scatter_add(tgt, idx, src, axis=0):
    return tgt.clone().index_add_(axis, idx, src)

def _segment_sum(src, seg, n):
    out = torch.zeros((n,) + src.shape[1:], dtype=src.dtype)
    return out.index_add_(0, seg, src)

def _pad(x, pw):
    flat = tuple((v for pair in reversed(pw) for v in pair))
    return torch.nn.functional.pad(x, flat)
kernel_name = 'parallel_sum__ssm_conv_s4__mixer_gmlp__prompt'

def setup_inputs():

    _w = lambda a: (lambda t: t.to(torch.bfloat16) if t.is_floating_point() else t)(torch.as_tensor(a))

    def _A_setup():
        B, L, D, N = (1, 2048, 512, 128)
        A_re = -(lambda _x: torch.exp(torch.as_tensor(_x)))((lambda *s: torch.randn(*s, dtype=torch.bfloat16) * 3.2)(D, N))
        A_im = torch.pi * (lambda *s: torch.randn(*s, dtype=torch.bfloat16) * 0.1)(D, N)
        B_re = (lambda *s: torch.randn(*s, dtype=torch.bfloat16) * 0.8)(D, N)
        B_im = (lambda *s: torch.randn(*s, dtype=torch.bfloat16) * 0.8)(D, N)
        C_re = (lambda *s: torch.randn(*s, dtype=torch.bfloat16) * 0.8)(D, N)
        C_im = (lambda *s: torch.randn(*s, dtype=torch.bfloat16) * 0.8)(D, N)
        log_dt = (lambda *s: torch.randn(*s, dtype=torch.bfloat16) * 0.1)(D) * 0.5 - 4.0
        Dskip = (lambda *s: torch.randn(*s, dtype=torch.bfloat16) * 0.8)(D)
        return {'u': _w((lambda *s: torch.randn(*s, dtype=torch.bfloat16) * 0.05)(B, L, D)), 'A_re': _w(A_re), 'A_im': _w(A_im), 'B_re': _w(B_re), 'B_im': _w(B_im), 'C_re': _w(C_re), 'C_im': _w(C_im), 'log_dt': _w(log_dt), 'Dskip': _w(Dskip)}
    _A_in = _A_setup()

    def _B_setup():
        B, S, D, F = (1, 2048, 512, 1792)
        Fh = F // 2
        return {'x': _w((lambda *s: torch.randn(*s, dtype=torch.bfloat16) * 0.05)(B, S, D)), 'w_in': _w((lambda *s: torch.randn(*s, dtype=torch.bfloat16) * 0.4)(D, 2 * Fh)), 'w_sp': _w(0.01 * (lambda *s: torch.randn(*s, dtype=torch.bfloat16) * 0.4)(S, S)), 'b_sp': _w(1.0 + 0.01 * (lambda *s: torch.randn(*s, dtype=torch.bfloat16) * 0.05)(S)), 'w_out': _w((lambda *s: torch.randn(*s, dtype=torch.bfloat16) * 0.05)(Fh, D))}
    _B_in = _B_setup()
    return {'A_u': _A_in['u'], 'A_A_re': _A_in['A_re'], 'A_A_im': _A_in['A_im'], 'A_B_re': _A_in['B_re'], 'A_B_im': _A_in['B_im'], 'A_C_re': _A_in['C_re'], 'A_C_im': _A_in['C_im'], 'A_log_dt': _A_in['log_dt'], 'A_Dskip': _A_in['Dskip'], 'B_x': _B_in['x'], 'B_w_in': _B_in['w_in'], 'B_w_sp': _B_in['w_sp'], 'B_b_sp': _B_in['b_sp'], 'B_w_out': _B_in['w_out']}

def reference(A_u, A_A_re, A_A_im, A_B_re, A_B_im, A_C_re, A_C_im, A_log_dt, A_Dskip, B_x, B_w_in, B_w_sp, B_b_sp, B_w_out):

    def _A_ref(u, A_re, A_im, B_re, B_im, C_re, C_im, log_dt, Dskip):
        Bsz, L, D = u.shape
        dt = torch.exp(log_dt)[:, None]
        A = A_re + 1j * A_im
        Bc = B_re + 1j * B_im
        Cc = C_re + 1j * C_im
        logdA = dt * A
        dB = dt * Bc
        l = (lambda x, dt: x.to(dt))(torch.arange(L), A_re.dtype)
        P = torch.exp(logdA[:, :, None] * l[None, None, :])
        K = torch.einsum('dn,dnl,dn->dl', Cc, P, dB).real
        L2 = 2 * L
        Kp = _pad(K, ((0, 0), (0, L)))
        up = (lambda x, *d: x.permute(*d))(u, 0, 2, 1)
        up = _pad(up, ((0, 0), (0, 0), (0, L)))
        Kf = (lambda x, axes=(-2, -1): torch.fft.rfft2(x.float(), dim=axes))(Kp[:, None, :], axes=(-2, -1))
        Uf = (lambda x, axes=(-2, -1): torch.fft.rfft2(x.float(), dim=axes))(up[:, :, None, :], axes=(-2, -1))
        Yf = Uf * Kf[None, :, :, :]
        y = (lambda x, s, axes=(-2, -1): torch.fft.irfft2(x, s=s, dim=axes).to(torch.bfloat16))(Yf, (1, L2), axes=(-2, -1))[:, :, 0, :L]
        y = (lambda x, *d: x.permute(*d))(y, 0, 2, 1) + u * Dskip[None, None, :]
        return y

    def _B_ref(x, w_in, w_sp, b_sp, w_out):
        B, S, D = x.shape
        F = w_in.shape[-1]
        Fh = F // 2
        z = _gelu(torch.einsum('bsd,df->bsf', x, w_in))
        z1 = z[..., :Fh].clone()
        z2 = _layernorm(z[..., Fh:], axis=-1)
        g = torch.einsum('ts,bsf->btf', w_sp, z2) + b_sp[None, :, None]
        return torch.einsum('bsf,fd->bsd', z1 * g, w_out)
    x = A_u
    xn = _layernorm(x, axis=-1)
    return x + _A_ref(xn, A_A_re, A_A_im, A_B_re, A_B_im, A_C_re, A_C_im, A_log_dt, A_Dskip) + _B_ref(xn, B_w_in, B_w_sp, B_b_sp, B_w_out)
```

```python
import re

REG_RE = re.compile(r'\b([vsa])(?:(\d+)|\[(\d+):(\d+)\])')
TRANS = ('v_exp_f32', 'v_log_f32', 'v_rcp_f32', 'v_rsq_f32', 'v_sqrt_f32', 'v_sin_f32', 'v_cos_f32', 'v_rcp_iflag_f32')

def regs_of(tok):
    out = set()
    for m in REG_RE.finditer(tok):
        k = m.group(1)
        if m.group(2) is not None:
            out.add((k, int(m.group(2))))
        else:
            for i in range(int(m.group(3)), int(m.group(4)) + 1):
                out.add((k, i))
    if re.search(r'\bvcc\b', tok): out |= {('s', 'vcc_lo'), ('s', 'vcc_hi')}
    if re.search(r'\bvcc_lo\b', tok): out.add(('s', 'vcc_lo'))
    if re.search(r'\bvcc_hi\b', tok): out.add(('s', 'vcc_hi'))
    if re.search(r'\bm0\b', tok): out.add(('s', 'm0'))
    return out

def split_ops(s):
    ops, depth, cur = [], 0, ''
    for ch in s:
        if ch == '[': depth += 1
        if ch == ']': depth -= 1
        if ch == ',' and depth == 0:
            ops.append(cur.strip()); cur = ''
        else:
            cur += ch
    if cur.strip(): ops.append(cur.strip())
    return ops

class Ins:
    __slots__ = ('text', 'mn', 'wr', 'rd', 'kind', 'passes', 'srcc', 'srcab', 'dpp', 'states', 'stdata', 'lds_dma', 'moved')
    def __init__(self, text):
        self.text = text
        t = text.split(';')[0].strip()
        parts = t.split(None, 1)
        mn = parts[0]; self.mn = mn
        rest = parts[1] if len(parts) > 1 else ''
        ops = split_ops(rest)
        self.wr = set(); self.rd = set(); self.srcc = set(); self.srcab = set(); self.stdata = set()
        self.passes = 0; self.dpp = ('_dpp' in mn) or ('row_' in rest) or ('quad_perm' in rest); self.states = 1
        self.lds_dma = False; self.moved = ('sdwa' in mn) or ('op_sel' in rest and not mn.startswith('v_pk_') and not mn.startswith('v_dot'))
        R = [regs_of(o) for o in ops]
        if mn == 's_nop':
            self.kind = 'nop'; self.states = int(ops[0], 0) + 1
        elif mn.startswith('v_mfma'):
            self.kind = 'mfma'
            self.passes = 4 if '16x16x32' in mn else (8 if ('32x32x16' in mn) else 16)
            self.wr = R[0]; self.srcab = R[1] | R[2]; self.srcc = R[3]; self.rd = self.srcab | self.srcc
        elif mn.startswith('v_'):
            self.kind = 'valu'
            if mn.startswith('v_cmp'):
                self.wr = R[0]; self.rd = set().union(*R[1:])
            elif mn.startswith('v_permlane') and 'swap' in mn:
                self.wr = R[0] | R[1]; self.rd = R[0] | R[1]
            elif mn.startswith(('v_add_co', 'v_sub_co', 'v_addc_co', 'v_subb_co', 'v_subrev_co', 'v_mad_u64', 'v_div_scale')):
                self.wr = R[0] | R[1]; self.rd = set().union(*R[2:])
            elif mn == 'v_nop':
                pass
            else:
                self.wr = R[0]; self.rd = set().union(*R[1:]) if len(R) > 1 else set()
                if mn.startswith(('v_fmac', 'v_dot2c', 'v_writelane', 'v_pk_fmac')) or self.dpp or 'sdwa' in mn:
                    self.rd |= R[0]
                if mn.startswith('v_cndmask') and len(ops) == 3:
                    self.rd |= {('s', 'vcc_lo'), ('s', 'vcc_hi')}
        elif mn.startswith(('buffer_', 'global_', 'flat_')):
            self.kind = 'vmem'
            allr = set().union(*R) if R else set()
            if ' lds' in (' ' + rest + ' ') and 'load' in mn or 'load_lds' in mn:
                self.lds_dma = True; self.rd = allr | {('s', 'm0')}
            elif 'load' in mn:
                self.wr = R[0]; self.rd = set().union(*R[1:])
                if 'd16' in mn: self.rd |= R[0]
            elif 'store' in mn:
                self.rd = allr
                data = R[0] if mn.startswith('buffer_') else R[1]
                if 'x4' in mn or 'x3' in mn: self.stdata = data
            elif 'atomic' in mn:
                self.rd = allr
                if 'sc0' in rest: self.wr = R[0]
            else:
                pass
        elif mn.startswith('ds_'):
            self.kind = 'ds'
            if 'read' in mn or 'bpermute' in mn or 'permute' in mn or 'swizzle' in mn or '_rtn' in mn:
                self.wr = R[0]; self.rd = set().union(*R[1:]) if len(R) > 1 else set()
                if 'd16' in mn: self.rd |= R[0]
            else:
                self.rd = set().union(*R) if R else set()
        elif mn.startswith('s_'):
            self.kind = 'salu'
            if mn.startswith(('s_cmp', 's_cbranch', 's_branch', 's_waitcnt', 's_barrier', 's_endpgm', 's_sleep', 's_setprio', 's_bitcmp')):
                self.rd = set().union(*R) if R else set()
            else:
                self.wr = R[0] if R else set(); self.rd = set().union(*R[1:]) if len(R) > 1 else set()
        else:
            raise ValueError('unknown instr ' + text)

def need(p, c):
    n = 0
    vw = {r for r in p.wr if r[0] in 'va'}
    sw = {r for r in p.wr if r[0] == 's'}
    if p.kind == 'valu':
        isdot = p.mn.startswith('v_dot')
        if c.kind == 'mfma' and vw & c.rd: n = max(n, 3 if isdot else 2)
        if c.kind == 'vmem' and sw & c.rd: n = max(n, 5)
        if c.kind == 'valu':
            if sw & c.rd:
                n = max(n, 4 if c.mn.startswith(('v_readlane', 'v_writelane')) else 2)
            if vw & c.rd:
                if c.dpp: n = max(n, 2)
                if c.mn.startswith(('v_readlane', 'v_readfirstlane')): n = max(n, 1)
                if c.mn.startswith('v_permlane'): n = max(n, 2)
                if p.mn.startswith(TRANS) and not c.mn.startswith(TRANS): n = max(n, 1)
                if p.mn.startswith(TRANS) and c.mn.startswith(TRANS): n = max(n, 1)
                if p.moved: n = max(n, 1)
            if isdot and vw & (c.rd | c.wr):
                if c.mn == p.mn:
                    ops = split_ops(c.text.split(';')[0].strip().split(None, 1)[1])
                    ab = regs_of(ops[1]) | regs_of(ops[2])
                    if vw & ab: n = max(n, 3)
                else:
                    n = max(n, 3)
        if isdot and c.kind in ('vmem', 'ds') and vw & c.rd: n = max(n, 3)
    if p.kind == 'mfma':
        P = p.passes
        raw = {2: 5, 4: 8, 8: 12, 16: 20}[P]
        if c.kind == 'mfma':
            if p.wr & c.srcab: n = max(n, raw)
            if p.wr & c.srcc:
                if p.wr == c.srcc and c.passes == P: n = max(n, 2 if P == 2 else 0)
                else: n = max(n, {2: 4, 4: 6, 8: 10, 16: 18}[P])
            elif p.wr & c.wr:
                n = max(n, raw)
        elif c.kind in ('valu', 'vmem', 'ds'):
            if p.wr & (c.rd | c.wr): n = max(n, raw)
        if c.kind == 'valu' and p.srcc & c.wr: n = max(n, {2: 1, 4: 3, 8: 7, 16: 15}[P])
    if p.kind == 'salu' and ('s', 'm0') in p.wr and c.lds_dma: n = max(n, 1)
    if p.kind == 'vmem' and p.stdata & c.wr: n = max(n, 2)
    if p.kind in ('vmem', 'ds') and c.dpp and False: pass
    return n

class Asm:
    def __init__(self):
        self.lines = []
        self.hist = []
        self.ninstr = 0
    def raw(self, text):
        self.lines.append(text)
    def label(self, name, flush=True):
        self.lines.append(name + ':')
    def fence(self, n=16):
        worst = 0; dist = 0
        for p in reversed(self.hist):
            w = 0
            if p.kind == 'mfma': w = {2: 5, 4: 8, 8: 12, 16: 20}[p.passes]
            elif p.kind == 'valu': w = 5 if any(r[0] == 's' for r in p.wr) else 3
            elif p.kind == 'vmem' and p.stdata: w = 2
            elif p.kind == 'salu' and ('s', 'm0') in p.wr: w = 1
            worst = max(worst, w - dist)
            dist += p.states
            if dist > 24: break
        self._nop(worst)
    def _nop(self, n):
        while n > 0:
            k = min(n, 16)
            i = Ins('s_nop %d' % (k - 1)); self.hist.append(i); self.lines.append('    ' + i.text); self.ninstr += 1
            n -= k
    def __call__(self, text):
        for t in text.strip().split('\n'):
            t = t.strip()
            if not t or t.startswith(';'):
                if t: self.lines.append('    ' + t)
                continue
            c = Ins(t)
            dist = 0; worst = 0
            for p in reversed(self.hist):
                worst = max(worst, need(p, c) - dist)
                dist += p.states
                if dist > 24: break
            self._nop(worst)
            self.hist.append(c)
            if len(self.hist) > 64: self.hist = self.hist[-40:]
            self.lines.append('    ' + t); self.ninstr += 1
    def text(self):
        return '\n'.join(self.lines) + '\n'

def vr(base, n=1):
    return 'v%d' % base if n == 1 else 'v[%d:%d]' % (base, base + n - 1)
def sr(base, n=1):
    return 's%d' % base if n == 1 else 's[%d:%d]' % (base, base + n - 1)

class Alloc:
    def __init__(self, start=0, limit=256):
        self.next = start; self.limit = limit; self.hi = start
    def __call__(self, n=1, align=None):
        if align is None: align = 1 if n == 1 else (2 if n == 2 else 4)
        b = (self.next + align - 1) // align * align
        self.next = b + n; self.hi = max(self.hi, self.next)
        assert self.next <= self.limit, 'out of registers %d' % self.next
        return b
    def mark(self): return self.next
    def release(self, m): self.next = m
```

```python
from asmlib import *
import struct, math

def f2u(x): return struct.unpack('<I', struct.pack('<f', x))[0]
def hx(x): return '0x%08x' % (x & 0xffffffff)
def fl(x): return hx(f2u(x))

KA = dict(x=0, are=8, aim=16, bre=24, bim=32, cre=40, cim=48, ldt=56, dsk=64, bx=72, win=80, wsp=88, bsp=96, wout=104, out=112, dbg=120, ws=128)

XNT_PITCH = 4224
Z2T_PITCH = 4224
def al(x, a=4096): return (x + a - 1) // a * a
WS_XNT = 0
WS_Z1 = al(WS_XNT + 512 * XNT_PITCH)
WS_Z2T = al(WS_Z1 + 2048 * 1792)
WS_H = al(WS_Z2T + 896 * Z2T_PITCH)
WS_YT = al(WS_H + 2048 * 1792)
WS_ST = al(WS_YT + 512 * 4096)
WS_END = al(WS_ST + 128 * 2048)

class VM:
    def __init__(self): self.ops = []
    def copy(self):
        v = VM(); v.ops = list(self.ops); return v
    def add(self, tag): self.ops.append(tag)
    def wait(self, a, *tags):
        last = -1
        for i, t in enumerate(self.ops):
            if t in tags: last = i
        assert last >= 0, tags
        n = len(self.ops) - 1 - last
        assert n <= 63
        a('s_waitcnt vmcnt(%d)' % n)
        self.ops = self.ops[last + 1:]

def srd(a, d, ptr, nbytes):
    a(f's_mov_b32 s{d}, s{ptr}')
    a(f's_and_b32 s{d+1}, s{ptr+1}, 0xffff')
    a(f's_mov_b32 s{d+2}, {hx(nbytes)}')
    a(f's_mov_b32 s{d+3}, 0x00020000')

def kernel_header(a, name):
    a.raw(f'.globl {name}\n.p2align 8\n.type {name},@function\n{name}:')
    a.hist = []

def kd(name, vgpr, sgpr=96, agpr=0):
    acc = (vgpr + 3) // 4 * 4
    nfv = acc + agpr if agpr else vgpr
    return f'''.p2align 6
.amdhsa_kernel {name}
  .amdhsa_next_free_vgpr {nfv}
  .amdhsa_next_free_sgpr {sgpr}
  .amdhsa_accum_offset {acc}
  .amdhsa_group_segment_fixed_size 0
  .amdhsa_kernarg_size 136
  .amdhsa_user_sgpr_count 2
  .amdhsa_user_sgpr_kernarg_segment_ptr 1
  .amdhsa_system_sgpr_workgroup_id_x 1
  .amdhsa_float_denorm_mode_32 3
.end_amdhsa_kernel'''

def sel_frag(a, dst, vi, vg, tmp, hi):
    t0, t1, t2 = tmp, tmp + 1, tmp + 2
    a(f'v_lshlrev_b32 v{t0}, 3, v{vg}')
    a(f'v_sub_u32 v{t0}, v{vi}, v{t0}')
    if hi: a(f'v_add_u32 v{t0}, 16, v{t0}')
    a(f'v_and_b32 v{t1}, 1, v{t0}')
    a(f'v_lshlrev_b32 v{t1}, 4, v{t1}')
    a(f'v_mov_b32 v{t2}, 0x3f80')
    a(f'v_lshlrev_b32 v{t1}, v{t1}, v{t2}')
    a(f'v_ashrrev_i32 v{t0}, 1, v{t0}')
    for j in range(4):
        a(f'v_cmp_eq_u32 vcc, {j}, v{t0}')
        a(f'v_cndmask_b32 v{dst+j}, 0, v{t1}, vcc')

GK1 = -2.0 * math.sqrt(2.0 / math.pi) * math.log2(math.e)
GK2 = GK1 * 0.044715
def gelu(a, regs, vk2, tmp):
    n = len(regs)
    for i, r in enumerate(regs): a(f'v_mul_f32 v{tmp+i}, v{r}, v{r}')
    for i, r in enumerate(regs): a(f'v_fmaak_f32 v{tmp+i}, v{vk2}, v{tmp+i}, {fl(GK1)}')
    for i, r in enumerate(regs): a(f'v_mul_f32 v{tmp+i}, v{r}, v{tmp+i}')
    for i, r in enumerate(regs): a(f'v_exp_f32 v{tmp+i}, v{tmp+i}')
    for i, r in enumerate(regs): a(f'v_add_f32 v{tmp+i}, 1.0, v{tmp+i}')
    for i, r in enumerate(regs): a(f'v_rcp_f32 v{tmp+i}, v{tmp+i}')
    for i, r in enumerate(regs): a(f'v_mul_f32 v{r}, v{r}, v{tmp+i}')

def ln_finalize(a, S, Q, n, negm, rinv, t):
    k = len(S)
    inv = fl(1.0 / n)
    for i in range(k): a(f'v_mul_f32 v{S[i]}, {inv}, v{S[i]}')
    for i in range(k): a(f'v_mul_f32 v{Q[i]}, {inv}, v{Q[i]}')
    for i in range(k): a(f'v_fma_f32 v{Q[i]}, -v{S[i]}, v{S[i]}, v{Q[i]}')
    for i in range(k): a(f'v_max_f32 v{Q[i]}, 0, v{Q[i]}')
    for i in range(k): a(f'v_cvt_pk_bf16_f32 v{t+i}, v{S[i]}, v{Q[i]}')
    for i in range(k): a(f'v_lshlrev_b32 v{negm[i]}, 16, v{t+i}')
    for i in range(k): a(f'v_xor_b32 v{negm[i]}, 0x80000000, v{negm[i]}')
    for i in range(k): a(f'v_and_b32 v{t+i}, 0xffff0000, v{t+i}')
    for i in range(k): a(f'v_add_f32 v{t+i}, {fl(1e-5)}, v{t+i}')
    for i in range(k): a(f'v_cvt_pk_bf16_f32 v{t+i}, v{t+i}, v{t+i}')
    for i in range(k): a(f'v_and_b32 v{t+i}, 0xffff0000, v{t+i}')
    for i in range(k): a(f'v_sqrt_f32 v{t+i}, v{t+i}')
    for i in range(k): a(f'v_cvt_pk_bf16_f32 v{t+i}, v{t+i}, v{t+i}')
    for i in range(k): a(f'v_and_b32 v{t+i}, 0xffff0000, v{t+i}')
    for i in range(k): a(f'v_rcp_f32 v{rinv[i]}, v{t+i}')
```

```python
from common import *

CH = 7168
NSLOT = 20
K1_LDS = NSLOT * CH

def gen_k1(a):
    name = 'k1_kernel'
    kernel_header(a, name)
    sX, sW, sWS, sD = 12, 16, 20, 24
    sRB, sCG, sWV, sWM, sWN = 28, 29, 30, 31, 32
    sT0, sT1, sT2, sAoff, sKs, sCol2, sCol1, sMw = 33, 34, 35, 36, 37, 38, 39, 40
    sEx = 42
    sT0row = 44
    a('s_cmp_ge_u32 s2, 256')
    a('s_cbranch_scc1 K1_END')
    a(f's_load_dwordx2 s[4:5], s[0:1], {KA["x"]}')
    a(f's_load_dwordx2 s[6:7], s[0:1], {KA["win"]}')
    a(f's_load_dwordx4 s[8:11], s[0:1], {KA["dbg"]}')
    V = Alloc(1)
    vL, vI, vG = V(), V(), V()
    vAoff, vBoff = V(), V()
    vT = V(8, 4)
    vTr = V(3)
    vK2 = V()
    vOnes = V()
    vA = V(64, 4)
    vB = V(32, 4)
    vC2 = V(16, 4)
    vC1 = V(16, 4)
    vP = V(8, 4)
    vS = V(8, 4)
    vU = V(16, 4)
    a(f'v_lshrrev_b32 v{vT}, 6, v0')
    a(f'v_and_b32 v{vL}, 63, v0')
    a(f'v_readfirstlane_b32 s{sWV}, v{vT}')
    a(f'v_and_b32 v{vI}, 15, v{vL}')
    a(f'v_lshrrev_b32 v{vG}, 4, v{vL}')
    a(f's_and_b32 s{sT0}, s2, 7')
    a(f's_lshr_b32 s{sT1}, s2, 3')
    a(f's_lshr_b32 s{sRB}, s{sT0}, 1')
    a(f's_lshl_b32 s{sRB}, s{sRB}, 3')
    a(f's_and_b32 s{sT2}, s{sT1}, 7')
    a(f's_add_u32 s{sRB}, s{sRB}, s{sT2}')
    a(f's_and_b32 s{sCG}, s{sT0}, 1')
    a(f's_lshl_b32 s{sCG}, s{sCG}, 2')
    a(f's_lshr_b32 s{sT2}, s{sT1}, 3')
    a(f's_add_u32 s{sCG}, s{sCG}, s{sT2}')
    a(f's_and_b32 s{sWM}, s{sWV}, 3')
    a(f's_lshr_b32 s{sWN}, s{sWV}, 2')
    a(f's_lshl_b32 s{sT0row}, s{sRB}, 6')
    a(f's_lshl_b32 s{sT0}, s{sWM}, 4')
    a(f's_add_u32 s{sT0row}, s{sT0row}, s{sT0}')
    a(f's_lshl_b32 s{sAoff}, s{sT0row}, 10')
    a(f's_lshl_b32 s{sKs}, s{sCG}, 1')
    a(f's_mul_i32 s{sCol1}, s{sCG}, 224')
    a(f's_add_u32 s{sCol2}, s{sCol1}, 1792')
    a(f's_mul_i32 s{sMw}, s{sWV}, 896')
    a(f'v_lshlrev_b32 v{vAoff}, 10, v{vI}')
    a(f'v_lshl_add_u32 v{vAoff}, v{vG}, 4, v{vAoff}')
    for L in range(64): assert (L * 4682) >> 16 == L // 14
    a(f'v_mul_u32_u24 v{vT}, 4682, v{vL}')
    a(f'v_lshrrev_b32 v{vT}, 16, v{vT}')
    a(f'v_mul_u32_u24 v{vT+1}, 14, v{vT}')
    a(f'v_sub_u32 v{vT+1}, v{vL}, v{vT+1}')
    a(f's_and_b32 s{sT0}, s{sWV}, 1')
    a(f's_lshl_b32 s{sT0}, s{sT0}, 3')
    a(f's_and_b32 s{sT1}, s{sWV}, 2')
    a(f's_lshl_b32 s{sT1}, s{sT1}, 1')
    a(f's_or_b32 s{sT0}, s{sT0}, s{sT1}')
    a(f's_and_b32 s{sT1}, s{sWV}, 4')
    a(f's_lshl_b32 s{sT1}, s{sT1}, 2')
    a(f's_or_b32 s{sT0}, s{sT0}, s{sT1}')
    a(f'v_or_b32 v{vT}, s{sT0}, v{vT}')
    a(f'v_mul_u32_u24 v{vBoff}, 3584, v{vT}')
    a(f'v_lshl_add_u32 v{vBoff}, v{vT+1}, 4, v{vBoff}')
    a('s_waitcnt lgkmcnt(0)')
    srd(a, sX, 4, 2048 * 1024)
    srd(a, sW, 6, 512 * 3584)
    srd(a, sWS, 10, WS_END)
    srd(a, sD, 8, 256)
    vm = VM()
    for i in range(16):
        a(f's_add_u32 s{sT0}, s{sKs}, {i}')
        a(f's_and_b32 s{sT0}, s{sT0}, 15')
        a(f's_lshl_b32 s{sT0}, s{sT0}, 6')
        a(f's_add_u32 s{sT0}, s{sT0}, s{sAoff}')
        a(f'buffer_load_dwordx4 {vr(vA+4*i,4)}, v{vAoff}, {sr(sX,4)}, s{sT0} offen')
        vm.add('A')
    def dma(a, vm, j0, j1):
        a(f's_mov_b32 exec_hi, 0x00ffffff')
        for j in range(j0, j1):
            a(f's_add_u32 s{sT0}, s{sKs}, {j & 15}')
            a(f's_and_b32 s{sT0}, s{sT0}, 15')
            a(f's_mul_i32 s{sT0}, s{sT0}, 114688')
            a(f's_add_u32 s{sT0}, s{sT0}, s{sCol2 if j < 16 else sCol1}')
            a(f's_add_u32 m0, s{sMw}, {(j % NSLOT) * CH}')
            a(f'buffer_load_dwordx4 v{vBoff}, {sr(sW,4)}, s{sT0} offen lds')
            vm.add('B%d' % j)
        a(f's_mov_b32 exec_hi, -1')
    dma(a, vm, 0, NSLOT)
    a(f'v_lshrrev_b32 v{vT}, 2, v{vI}')
    a(f'v_and_b32 v{vT+1}, 1, v{vG}')
    a(f'v_lshl_add_u32 v{vT}, v{vT+1}, 2, v{vT}')
    a(f'v_lshrrev_b32 v{vT+1}, 1, v{vG}')
    a(f'v_lshl_add_u32 v{vT}, v{vT+1}, 4, v{vT}')
    a(f'v_mul_u32_u24 v{vT}, 224, v{vT}')
    a(f'v_and_b32 v{vT+1}, 3, v{vI}')
    a(f'v_lshl_add_u32 v{vT}, v{vT+1}, 3, v{vT}')
    a(f's_lshl_b32 s{sT0}, s{sWN}, 7')
    a(f'v_add_u32 v{vTr}, s{sT0}, v{vT}')
    a(f'v_add_u32 v{vTr+1}, {9*CH}, v{vTr}')
    a(f'v_add_u32 v{vTr+2}, {18*CH}, v{vTr}')
    a(f'v_mov_b32 v{vK2}, {fl(GK2)}')
    a(f'v_mov_b32 v{vOnes}, 0x3f803f80')
    sel_frag(a, vB, vI, vG, vT, 0)
    sel_frag(a, vB + 4, vI, vG, vT, 1)
    for i in range(16):
        a(f'v_mov_b32 v{vC2+i}, 0')
        a(f'v_mov_b32 v{vC1+i}, 0')
    for i in range(8): a(f'v_mov_b32 v{vS+i}, 0')
    vm.wait(a, 'A')
    for i in range(64):
        a(f'v_dot2_f32_bf16 v{vS+(i&3)}, v{vA+i}, v{vOnes}, v{vS+(i&3)}')
        a(f'v_dot2_f32_bf16 v{vS+4+(i&3)}, v{vA+i}, v{vA+i}, v{vS+4+(i&3)}')
    a(f'v_add_f32 v{vS}, v{vS}, v{vS+1}')
    a(f'v_add_f32 v{vS+2}, v{vS+2}, v{vS+3}')
    a(f'v_add_f32 v{vS+4}, v{vS+4}, v{vS+5}')
    a(f'v_add_f32 v{vS+6}, v{vS+6}, v{vS+7}')
    a(f'v_add_f32 v{vS}, v{vS}, v{vS+2}')
    a(f'v_add_f32 v{vS+4}, v{vS+4}, v{vS+6}')
    for sw in ('v_permlane16_swap_b32', 'v_permlane32_swap_b32'):
        a(f'v_mov_b32 v{vS+1}, v{vS}')
        a(f'v_mov_b32 v{vS+5}, v{vS+4}')
        a(f'{sw} v{vS}, v{vS+1}')
        a(f'{sw} v{vS+4}, v{vS+5}')
        a(f'v_add_f32 v{vS}, v{vS}, v{vS+1}')
        a(f'v_add_f32 v{vS+4}, v{vS+4}, v{vS+5}')
    vNm, vR = vS + 2, vS + 3
    ln_finalize(a, [vS], [vS + 4], 512, [vNm], [vR], vT)
    G = 4
    for i0 in range(0, 64, G):
        for i in range(G): a(f'v_lshlrev_b32 v{vU+2*i}, 16, v{vA+i0+i}')
        for i in range(G): a(f'v_and_b32 v{vU+2*i+1}, 0xffff0000, v{vA+i0+i}')
        for i in range(2*G): a(f'v_add_f32 v{vU+i}, v{vNm}, v{vU+i}')
        for i in range(G): a(f'v_cvt_pk_bf16_f32 v{vA+i0+i}, v{vU+2*i}, v{vU+2*i+1}')
        for i in range(G): a(f'v_lshlrev_b32 v{vU+2*i}, 16, v{vA+i0+i}')
        for i in range(G): a(f'v_and_b32 v{vU+2*i+1}, 0xffff0000, v{vA+i0+i}')
        for i in range(2*G): a(f'v_mul_f32 v{vU+i}, v{vR}, v{vU+i}')
        for i in range(G): a(f'v_cvt_pk_bf16_f32 v{vA+i0+i}, v{vU+2*i}, v{vU+2*i+1}')
    a(f's_cmp_eq_u32 s{sWN}, 0')
    a(f's_cselect_b64 vcc, -1, 0')
    for j in range(4): a(f'v_cndmask_b32 v{vU+j}, v{vA+4+j}, v{vA+j}, vcc')
    a(f'v_mfma_f32_16x16x32_bf16 {vr(vU+4,4)}, {vr(vU,4)}, {vr(vB,4)}, 0')
    a(f'v_mfma_f32_16x16x32_bf16 {vr(vU+8,4)}, {vr(vU,4)}, {vr(vB+4,4)}, 0')
    a(f's_lshl_b32 s{sT0}, s{sCG}, 6')
    a(f's_lshl_b32 s{sT1}, s{sWN}, 5')
    a(f's_add_u32 s{sT0}, s{sT0}, s{sT1}')
    a(f's_mul_i32 s{sT0}, s{sT0}, {XNT_PITCH}')
    a(f's_lshl_b32 s{sT1}, s{sT0row}, 1')
    a(f's_add_u32 s{sT0}, s{sT0}, s{sT1}')
    a(f's_add_u32 s{sT0}, s{sT0}, {WS_XNT + 128}')
    a(f's_add_u32 s{sT1}, s{sT0}, {16 * XNT_PITCH}')
    vTa = V()
    assert XNT_PITCH == Z2T_PITCH
    a(f'v_mul_u32_u24 v{vTa}, {XNT_PITCH}, v{vI}')
    a(f'v_lshl_add_u32 v{vTa}, v{vG}, 3, v{vTa}')
    a(f'v_cvt_pk_bf16_f32 v{vU+12}, v{vU+4}, v{vU+5}')
    a(f'v_cvt_pk_bf16_f32 v{vU+13}, v{vU+6}, v{vU+7}')
    a(f'v_cvt_pk_bf16_f32 v{vU+14}, v{vU+8}, v{vU+9}')
    a(f'v_cvt_pk_bf16_f32 v{vU+15}, v{vU+10}, v{vU+11}')
    a(f'buffer_store_dwordx2 {vr(vU+12,2)}, v{vTa}, {sr(sWS,4)}, s{sT0} offen'); vm.add('st')
    a(f'buffer_store_dwordx2 {vr(vU+14,2)}, v{vTa}, {sr(sWS,4)}, s{sT1} offen'); vm.add('st')
    a(f's_cmp_eq_u32 s{sWN}, 0')
    a.fence()
    a('s_cbranch_scc0 K1_WN1')
    hist0 = list(a.hist)

    def path(a, vm, wn):
        nt = 4 if wn == 0 else 3
        def reads(j, bs):
            slot = j % NSLOT
            base = vTr + slot // 9
            off = (slot % 9) * CH
            for t in range(nt):
                for h in range(2):
                    a(f'ds_read_b64_tr_b16 {vr(vB+16*bs+4*t+2*h,2)}, v{base} offset:{off + h*1792 + t*32}')
        def mfmas(j, bs):
            for t in range(nt):
                if j < 16:
                    a(f'v_mfma_f32_16x16x32_bf16 {vr(vC2+4*t,4)}, {vr(vA+4*(j&15),4)}, {vr(vB+16*bs+4*t,4)}, {vr(vC2+4*t,4)}')
                else:
                    a(f'v_mfma_f32_16x16x32_bf16 {vr(vC1+4*t,4)}, {vr(vB+16*bs+4*t,4)}, {vr(vA+4*(j&15),4)}, {vr(vC1+4*t,4)}')
        for s in range(8):
            if s == 6: vm.wait(a, 'B%d' % (4*s+3), 'stat')
            elif s == 7: a('s_waitcnt vmcnt(0)'); vm.ops = []
            else: vm.wait(a, 'B%d' % (4*s+3))
            a('s_barrier')
            reads(4*s, 0)
            if s in (1, 2): dma(a, vm, 16 + 4*s, 20 + 4*s)
            if s == 6 and wn == 0:
                a(f's_cmp_lg_u32 s{sWV}, 0')
                a(f's_cbranch_scc1 K1_NOSIG')
                a(f's_mov_b64 exec, 1')
                a(f's_lshl_b32 s{sT0}, s{sRB}, 2')
                a(f'v_mov_b32 v{vT}, 1')
                a(f'v_mov_b32 v{vT+1}, 0')
                a(f'buffer_atomic_add v{vT}, v{vT+1}, {sr(sD,4)}, s{sT0} offen')
                a(f's_mov_b64 exec, -1')
                a.label('K1_NOSIG')
            for c in range(4):
                j = 4*s + c
                if c < 3:
                    reads(j + 1, (c + 1) & 1)
                    a(f's_waitcnt lgkmcnt({2*nt})')
                else:
                    a('s_waitcnt lgkmcnt(0)')
                mfmas(j, c & 1)
            if s == 3:
                regs = [vC2 + i for i in range(4*nt)]
                gelu(a, regs, vK2, vU)
                for r in range(4):
                    a(f'v_cvt_pk_bf16_f32 v{vP+r}, v{vC2+r}, v{vC2+4+r}')
                    if nt == 4: a(f'v_cvt_pk_bf16_f32 v{vP+4+r}, v{vC2+8+r}, v{vC2+12+r}')
                    else: a(f'v_cvt_pk_bf16_f32 v{vP+4+r}, v{vC2+8+r}, 0')
                for r in range(4):
                    a(f'v_dot2_f32_bf16 v{vS+r}, v{vP+r}, v{vOnes}, 0')
                    a(f'v_dot2_f32_bf16 v{vS+4+r}, v{vP+r}, v{vP+r}, 0')
                for r in range(4):
                    a(f'v_dot2_f32_bf16 v{vS+r}, v{vP+4+r}, v{vOnes}, v{vS+r}')
                    a(f'v_dot2_f32_bf16 v{vS+4+r}, v{vP+4+r}, v{vP+4+r}, v{vS+4+r}')
                for ror in (8, 4, 2, 1):
                    for r in range(8):
                        a(f'v_add_f32_dpp v{vS+r}, v{vS+r}, v{vS+r} row_ror:{ror} row_mask:0xf bank_mask:0xf')
                a(f'v_cmp_eq_u32 vcc, 1, v{vI}')
                for r in range(4): a(f'v_cndmask_b32 v{vU+r}, v{vS+r}, v{vS+4+r}, vcc')
                a(f's_lshl_b32 s{sT0}, s{sRB}, 2')
                a(f's_add_u32 s{sT0}, s{sT0}, s{sWM}')
                a(f's_lshl_b32 s{sT0}, s{sT0}, 4')
                a(f's_lshl_b32 s{sT1}, s{sCG}, 1')
                a(f's_add_u32 s{sT0}, s{sT0}, s{sT1}')
                a(f's_add_u32 s{sT0}, s{sT0}, {wn}')
                a(f's_lshl_b32 s{sT0}, s{sT0}, 7')
                a(f's_add_u32 s{sT0}, s{sT0}, {WS_ST}')
                a(f'v_lshlrev_b32 v{vT}, 6, v{vI}')
                a(f'v_lshl_add_u32 v{vT}, v{vG}, 4, v{vT}')
                a(f's_mov_b32 exec_lo, 0x00030003')
                a(f's_mov_b32 exec_hi, 0x00030003')
                a(f'buffer_store_dwordx4 {vr(vU,4)}, v{vT}, {sr(sWS,4)}, s{sT0} offen sc1'); vm.add('stat')
                a(f's_mov_b64 exec, -1')
                dma(a, vm, 28, 32)
        regs = [vC1 + i for i in range(4*nt)]
        gelu(a, regs, vK2, vU)
        a(f's_mul_i32 s{sT0}, s{sT0row}, 1792')
        a(f's_add_u32 s{sT0}, s{sT0}, s{sCol1}')
        a(f's_add_u32 s{sT0}, s{sT0}, {WS_Z1 + wn * 128}')
        a(f'v_mul_u32_u24 v{vT}, 1792, v{vI}')
        a(f'v_lshl_add_u32 v{vT}, v{vG}, 3, v{vT}')
        for t in range(nt):
            a(f'v_cvt_pk_bf16_f32 v{vU+2*t}, v{vC1+4*t}, v{vC1+4*t+1}')
            a(f'v_cvt_pk_bf16_f32 v{vU+2*t+1}, v{vC1+4*t+2}, v{vC1+4*t+3}')
            a(f'buffer_store_dwordx2 {vr(vU+2*t,2)}, v{vT}, {sr(sWS,4)}, s{sT0} offen offset:{32*t}')
        a(f's_lshl_b32 s{sT0}, s{sRB}, 2')
        a(f'v_mov_b32 v{vT+1}, 0')
        a(f's_mov_b32 s{sT2}, 0')
        a.label(f'K1_POLL{wn}')
        a(f'buffer_load_dword v{vT+2}, v{vT+1}, {sr(sD,4)}, s{sT0} offen sc1')
        a('s_waitcnt vmcnt(0)')
        a(f'v_readfirstlane_b32 s{sT1}, v{vT+2}')
        a(f's_cmp_ge_u32 s{sT1}, 8')
        a(f's_cbranch_scc1 K1_GO{wn}')
        a('s_sleep 2')
        a(f's_add_u32 s{sT2}, s{sT2}, 1')
        a(f's_cmp_lt_u32 s{sT2}, 0x40000')
        a(f's_cbranch_scc1 K1_POLL{wn}')
        a.label(f'K1_GO{wn}')
        a(f's_lshl_b32 s{sT0}, s{sRB}, 2')
        a(f's_add_u32 s{sT0}, s{sT0}, s{sWM}')
        a(f's_lshl_b32 s{sT0}, s{sT0}, 11')
        a(f's_add_u32 s{sT0}, s{sT0}, {WS_ST}')
        a(f'v_lshlrev_b32 v{vT}, 7, v{vI}')
        a(f'v_lshl_add_u32 v{vT}, v{vG}, 4, v{vT}')
        a(f'buffer_load_dwordx4 {vr(vS,4)}, v{vT}, {sr(sWS,4)}, s{sT0} offen sc1')
        a(f'buffer_load_dwordx4 {vr(vS+4,4)}, v{vT}, {sr(sWS,4)}, s{sT0} offen offset:64 sc1')
        a('s_waitcnt vmcnt(0)')
        for ror in (8, 4, 2, 1):
            for r in range(8):
                a(f'v_add_f32_dpp v{vS+r}, v{vS+r}, v{vS+r} row_ror:{ror} row_mask:0xf bank_mask:0xf')
        nm = [vC1 + r for r in range(4)]; ri = [vC1 + 4 + r for r in range(4)]
        ln_finalize(a, [vS + r for r in range(4)], [vS + 4 + r for r in range(4)], 896, nm, ri, vT)
        for tp in range(2):
            for r in range(4):
                a(f'v_lshlrev_b32 v{vU+r}, 16, v{vP+4*tp+r}')
                a(f'v_and_b32 v{vU+4+r}, 0xffff0000, v{vP+4*tp+r}')
            for r in range(4):
                a(f'v_add_f32 v{vU+r}, v{nm[r]}, v{vU+r}')
                a(f'v_add_f32 v{vU+4+r}, v{nm[r]}, v{vU+4+r}')
            for r in range(4):
                a(f'v_cvt_pk_bf16_f32 v{vU+8+r}, v{vU+r}, v{vU+4+r}')
            for r in range(4):
                a(f'v_lshlrev_b32 v{vU+r}, 16, v{vU+8+r}')
                a(f'v_and_b32 v{vU+4+r}, 0xffff0000, v{vU+8+r}')
            for r in range(4):
                a(f'v_mul_f32 v{vU+r}, v{ri[r]}, v{vU+r}')
                a(f'v_mul_f32 v{vU+4+r}, v{ri[r]}, v{vU+4+r}')
            a(f'v_cvt_pk_bf16_f32 v{vC2+4*tp}, v{vU}, v{vU+1}')
            a(f'v_cvt_pk_bf16_f32 v{vC2+4*tp+1}, v{vU+2}, v{vU+3}')
            a(f'v_cvt_pk_bf16_f32 v{vC2+4*tp+2}, v{vU+4}, v{vU+5}')
            a(f'v_cvt_pk_bf16_f32 v{vC2+4*tp+3}, v{vU+6}, v{vU+7}')
        a(f's_mul_i32 s{sT0}, s{sCG}, {112 * Z2T_PITCH}')
        a(f's_lshl_b32 s{sT1}, s{sT0row}, 1')
        a(f's_add_u32 s{sT0}, s{sT0}, s{sT1}')
        a(f's_add_u32 s{sT0}, s{sT0}, {WS_Z2T + wn * 64 * Z2T_PITCH}')
        for t in range(nt):
            a(f'buffer_store_dwordx2 {vr(vC2+2*t,2)}, v{vTa}, {sr(sWS,4)}, s{sT0} offen')
            if t < nt - 1: a(f's_add_u32 s{sT0}, s{sT0}, {16 * Z2T_PITCH}')
        if wn == 1:
            a(f's_cmp_lg_u32 s{sRB}, 0')
            a('s_cbranch_scc1 K1_END')
            a(f's_cmp_lg_u32 s{sWV}, 4')
            a('s_cbranch_scc1 K1_END')
            a(f's_mul_i32 s{sT0}, s{sCG}, {64 * XNT_PITCH}')
            a(f's_add_u32 s{sT0}, s{sT0}, {WS_XNT + 112}')
            a(f'v_mul_u32_u24 v{vT}, {XNT_PITCH}, v{vL}')
            for r in range(4): a(f'v_mov_b32 v{vU+r}, 0')
            a(f'buffer_store_dwordx4 {vr(vU,4)}, v{vT}, {sr(sWS,4)}, s{sT0} offen')
        a('s_endpgm')

    path(a, vm.copy(), 0)
    a.label('K1_WN1'); a.hist = hist0
    path(a, vm.copy(), 1)
    a.label('K1_END')
    a('s_endpgm')
    return dict(name=name, grid=256, block=512, lds=K1_LDS, vgpr=V.hi, sgpr=48)
```

```python
from common import *

UCP = 4160
L_FLAG = 0
L_U = 64
L_UCH = 8 * UCP
L_K = L_U + 2 * L_UCH
L_KCH = 4608
L_STG = L_K + 2 * L_KCH
L_STGW = 5120
L_RED = L_STG + 4 * L_STGW
L_REDW = 14336
K2_LDS = L_RED + 4 * L_REDW
assert K2_LDS <= 163840
SP = 288

def gen_k2(a):
    name = 'k2_kernel'
    kernel_header(a, name)
    sWS, sWsp = 12, 16
    sTB, sFB, sWV = 20, 21, 22
    sT0, sT1, sT2, sT3 = 23, 24, 25, 26
    sZo = 28
    sWo = 36
    a('s_cmp_ge_u32 s2, 256')
    a('s_cbranch_scc1 K2_END')
    a(f's_load_dwordx2 s[4:5], s[0:1], {KA["ws"]}')
    a(f's_load_dwordx4 s[8:11], s[0:1], {KA["wsp"]}')
    a(f's_load_dwordx8 s[44:51], s[0:1], {KA["are"]}')
    a(f's_load_dwordx8 s[52:59], s[0:1], {KA["cre"]}')
    vL, vI, vG, vFo, vFp, vTm = 1, 2, 3, 4, 5, 6
    a(f'v_lshrrev_b32 v{vTm}, 6, v0')
    a(f'v_and_b32 v{vL}, 63, v0')
    a(f'v_readfirstlane_b32 s{sWV}, v{vTm}')
    a(f'v_and_b32 v{vI}, 15, v{vL}')
    a(f'v_lshrrev_b32 v{vG}, 4, v{vL}')
    a(f'v_lshlrev_b32 v{vFo}, 2, v{vTm}')
    a(f'v_mov_b32 v{vTm}, 0')
    a(f'ds_write_b32 v{vFo}, v{vTm}')
    a('s_waitcnt lgkmcnt(0)')
    srd(a, sWS, 4, WS_END)
    srd(a, sWsp, 8, 2048 * 4096)
    uid = [0]
    def signal(k):
        a(f'v_mov_b32 v{vTm}, {k}')
        a('s_waitcnt lgkmcnt(0)')
        a(f'ds_write_b32 v{vFo}, v{vTm}')
    def waitflag(x, k):
        uid[0] += 1
        a(f'v_xor_b32 v{vFp}, {4*x}, v{vFo}')
        a(f's_mov_b32 s27, 0')
        a.label(f'K2_W{uid[0]}')
        a(f'ds_read_b32 v{vTm}, v{vFp}')
        a('s_waitcnt lgkmcnt(0)')
        a(f'v_readfirstlane_b32 s{sT3}, v{vTm}')
        a(f's_cmp_ge_u32 s{sT3}, {k}')
        a(f's_cbranch_scc1 K2_G{uid[0]}')
        a('s_sleep 1')
        a(f's_add_u32 s27, s27, 1')
        a(f's_cmp_lt_u32 s27, 0x200000')
        a(f's_cbranch_scc1 K2_W{uid[0]}')
        a.label(f'K2_G{uid[0]}')
    a(f's_cmp_ge_u32 s{sWV}, 4')
    a.fence()
    a('s_cbranch_scc1 K2_CONV')
    hist0 = list(a.hist)

    V = Alloc(7)
    vZo, vWo = V(), V()
    vAcc = V(112, 4)
    vF = V(132, 4)
    def zf(buf, t): return vF + 44 * buf + 16 + 4 * t
    def wf(buf, s): return vF + 44 * buf + 4 * s
    def acc(s, t): return vAcc + 28 * s + 4 * t
    a(f's_and_b32 s{sT0}, s2, 7')
    a(f's_lshr_b32 s{sT1}, s2, 3')
    a(f's_lshr_b32 s{sTB}, s{sT0}, 1')
    a(f's_lshl_b32 s{sTB}, s{sTB}, 3')
    a(f's_and_b32 s{sT2}, s{sT1}, 7')
    a(f's_add_u32 s{sTB}, s{sTB}, s{sT2}')
    a(f's_and_b32 s{sFB}, s{sT0}, 1')
    a(f's_lshl_b32 s{sFB}, s{sFB}, 2')
    a(f's_lshr_b32 s{sT2}, s{sT1}, 3')
    a(f's_add_u32 s{sFB}, s{sFB}, s{sT2}')
    a(f's_mul_i32 s{sZo}, s{sFB}, {112 * Z2T_PITCH}')
    a(f's_add_u32 s{sZo}, s{sZo}, {WS_Z2T}')
    for t in range(1, 7): a(f's_add_u32 s{sZo+t}, s{sZo}, {16 * t * Z2T_PITCH}')
    a(f's_lshl_b32 s{sT0}, s{sTB}, 18')
    for s in range(4):
        a(f's_xor_b32 s{sT1}, s{sWV}, {s}')
        a(f's_lshl_b32 s{sT1}, s{sT1}, 16')
        a(f's_add_u32 s{sWo+s}, s{sT0}, s{sT1}')
    a(f's_lshl_b32 s{sT0}, s{sWV}, 10')
    a(f'v_lshl_add_u32 v{vTm}, v{vG}, 4, s{sT0}')
    a(f'v_mul_u32_u24 v{vZo}, {Z2T_PITCH}, v{vI}')
    a(f'v_add_u32 v{vZo}, v{vZo}, v{vTm}')
    a(f'v_lshl_add_u32 v{vWo}, v{vI}, 12, v{vTm}')
    vm = VM()
    def ldw(ks, s):
        a(f'buffer_load_dwordx4 {vr(wf(ks%3,s),4)}, v{vWo}, {sr(sWsp,4)}, s{sWo+s} offen offset:{64*ks}'); vm.add(('W', ks, s))
    def ldz(ks, t):
        a(f'buffer_load_dwordx4 {vr(zf(ks%3,t),4)}, v{vZo}, {sr(sWS,4)}, s{sZo+t} offen offset:{64*ks}'); vm.add(('Z', ks, t))
    for ks in range(3):
        for s in range(4): ldw(ks, s)
        for t in range(7): ldz(ks, t)
    a('s_barrier')
    for ks in range(16):
        for t in range(7):
            need_ = [('Z', ks, t)] + ([('W', ks, s) for s in range(4)] if t == 0 else [])
            pend = [x for x in need_ if x in vm.ops]
            if pend: vm.wait(a, *pend)
            for s in range(4):
                c = '0' if ks == 0 else vr(acc(s, t), 4)
                a(f'v_mfma_f32_16x16x32_bf16 {vr(acc(s,t),4)}, {vr(zf(ks%3,t),4)}, {vr(wf(ks%3,s),4)}, {c}')
            if ks + 3 < 16: ldz(ks + 3, t)
        if ks + 3 < 16:
            for s in range(4): ldw(ks + 3, s)
    vZ1 = vF
    vBs = vF + 16
    vAd = vF + 17
    vRa = vF + 18
    vRd = vF + 20
    a(f's_lshl_b32 s{sT0}, s{sTB}, 6')
    a(f's_lshl_b32 s{sT1}, s{sWV}, 4')
    a(f's_add_u32 s{sT0}, s{sT0}, s{sT1}')
    a(f'v_add_u32 v{vBs}, s{sT0}, v{vI}')
    a(f'v_lshlrev_b32 v{vBs}, 1, v{vBs}')
    a(f'global_load_ushort v{vBs}, v{vBs}, s[10:11]')
    a(f's_mul_i32 s{sT0}, s{sT0}, 1792')
    a(f's_mul_i32 s{sT1}, s{sFB}, 224')
    a(f's_add_u32 s{sT0}, s{sT0}, s{sT1}')
    a(f's_add_u32 s{sT1}, s{sT0}, {WS_Z1}')
    a(f's_add_u32 s{sT2}, s{sT0}, {WS_H}')
    a(f'v_mul_u32_u24 v{vAd}, 1792, v{vI}')
    a(f'v_lshl_add_u32 v{vAd}, v{vG}, 3, v{vAd}')
    for t in range(7):
        a(f'buffer_load_dwordx2 {vr(vZ1+2*t,2)}, v{vAd}, {sr(sWS,4)}, s{sT1} offen offset:{32*t}')
    a(f's_mul_i32 s{sT0}, s{sWV}, {L_REDW}')
    a(f's_add_u32 s{sT0}, s{sT0}, {L_RED}')
    a(f'v_lshl_add_u32 v{vRa}, v{vL}, 4, s{sT0}')
    a(f's_xor_b32 s{sT0}, s{sWV}, 1')
    a(f's_mul_i32 s{sT0}, s{sT0}, {L_REDW}')
    a(f's_add_u32 s{sT0}, s{sT0}, {L_RED}')
    a(f'v_lshl_add_u32 v{vRa+1}, v{vL}, 4, s{sT0}')
    for k, s in enumerate((1, 3)):
        for t in range(7):
            a(f'ds_write_b128 v{vRa}, {vr(acc(s,t),4)} offset:{1024*(7*k+t)}')
    signal(1)
    waitflag(1, 1)
    for k in range(14): a(f'ds_read_b128 {vr(vRd+4*k,4)}, v{vRa+1} offset:{1024*k}')
    for k, s in ((1, 2), (0, 0)):
        pass
    for k in range(14):
        a(f's_waitcnt lgkmcnt({13-k})')
        s = 0 if k < 7 else 2
        for r in range(4): a(f'v_add_f32 v{acc(s,k%7)+r}, v{acc(s,k%7)+r}, v{vRd+4*k+r}')
    for t in range(7):
        a(f'ds_write_b128 v{vRa+1}, {vr(acc(2,t),4)} offset:{1024*t}')
    signal(2)
    waitflag(2, 2)
    a(f's_xor_b32 s{sT0}, s{sWV}, 3')
    a(f's_mul_i32 s{sT0}, s{sT0}, {L_REDW}')
    a(f's_add_u32 s{sT0}, s{sT0}, {L_RED}')
    a(f'v_lshl_add_u32 v{vRa}, v{vL}, 4, s{sT0}')
    for k in range(7): a(f'ds_read_b128 {vr(vRd+4*k,4)}, v{vRa} offset:{1024*k}')
    a('s_waitcnt vmcnt(0)')
    a(f'v_lshlrev_b32 v{vBs}, 16, v{vBs}')
    U = vAcc + 28
    for t in range(7):
        a(f's_waitcnt lgkmcnt({6-t})')
        c = acc(0, t)
        for r in range(4): a(f'v_add_f32 v{c+r}, v{c+r}, v{vRd+4*t+r}')
        a(f'v_cvt_pk_bf16_f32 v{U}, v{c}, v{c+1}')
        a(f'v_cvt_pk_bf16_f32 v{U+1}, v{c+2}, v{c+3}')
        for q in range(2):
            a(f'v_lshlrev_b32 v{c+2*q}, 16, v{U+q}')
            a(f'v_and_b32 v{c+2*q+1}, 0xffff0000, v{U+q}')
        for r in range(4): a(f'v_add_f32 v{c+r}, v{vBs}, v{c+r}')
        a(f'v_cvt_pk_bf16_f32 v{U}, v{c}, v{c+1}')
        a(f'v_cvt_pk_bf16_f32 v{U+1}, v{c+2}, v{c+3}')
        for q in range(2):
            a(f'v_lshlrev_b32 v{c+2*q}, 16, v{U+q}')
            a(f'v_and_b32 v{c+2*q+1}, 0xffff0000, v{U+q}')
            a(f'v_lshlrev_b32 v{U+2+2*q}, 16, v{vZ1+2*t+q}')
            a(f'v_and_b32 v{U+3+2*q}, 0xffff0000, v{vZ1+2*t+q}')
        for r in range(4): a(f'v_mul_f32 v{c+r}, v{c+r}, v{U+2+r}')
        a(f'v_cvt_pk_bf16_f32 v{vZ1+2*t}, v{c}, v{c+1}')
        a(f'v_cvt_pk_bf16_f32 v{vZ1+2*t+1}, v{c+2}, v{c+3}')
        a(f'buffer_store_dwordx2 {vr(vZ1+2*t,2)}, v{vAd}, {sr(sWS,4)}, s{sT2} offen offset:{32*t}')
    a('s_endpgm')
    gemm_hi = V.hi

    a.label('K2_CONV'); a.hist = hist0
    sCH, sHF, sD, sUb, sKb, sSt, sDk = 28, 29, 30, 31, 32, 33, 34
    V = Alloc(7)
    vP = V(6)
    vSw, vSr = V(), V()
    vA2, vBr = V(), V()
    vL1, vL8, vP1 = V(2), V(2), V(2)
    vE = V(16, 4)
    vY = V(2)
    vt = V(8, 4)
    vYf = V(32, 4)
    vXf = V(16, 4)
    vD = V(20, 4)
    vQ = V(12, 4)
    a(f's_lshr_b32 s{sCH}, s{sWV}, 1')
    a(f's_and_b32 s{sCH}, s{sCH}, 1')
    a(f's_and_b32 s{sHF}, s{sWV}, 1')
    a(f's_lshl_b32 s{sD}, s2, 1')
    a(f's_add_u32 s{sD}, s{sD}, s{sCH}')
    a(f's_lshl_b32 s{sT0}, s{sD}, 8')
    a(f's_lshl_b32 s{sT1}, s{sHF}, 7')
    a(f's_add_u32 s{sT0}, s{sT0}, s{sT1}')
    a(f'v_lshl_add_u32 v{vTm}, v{vL}, 1, s{sT0}')
    for k in range(6):
        a(f'global_load_ushort v{vP+k}, v{vTm}, s[{44+2*k}:{45+2*k}]')
    a(f's_lshl_b32 s{sT0}, s2, 2')
    a(f's_load_dword s{sT1}, s[56:57], s{sT0}')
    a(f's_load_dword s{sDk}, s[58:59], s{sT0}')
    a(f's_mul_i32 s{sUb}, s{sCH}, {L_UCH}')
    a(f's_add_u32 s{sUb}, s{sUb}, {L_U}')
    a(f's_mul_i32 s{sKb}, s{sCH}, {L_KCH}')
    a(f's_add_u32 s{sKb}, s{sKb}, {L_K}')
    a(f's_sub_u32 s{sSt}, s{sWV}, 4')
    a(f's_mul_i32 s{sSt}, s{sSt}, {L_STGW}')
    a(f's_add_u32 s{sSt}, s{sSt}, {L_STG}')
    a(f's_mul_i32 s{sT2}, s{sD}, {XNT_PITCH}')
    a(f's_lshl_b32 s{sT0}, s{sHF}, 3')
    a(f's_add_u32 s{sT2}, s{sT2}, s{sT0}')
    a(f's_add_u32 s{sT2}, s{sT2}, {WS_XNT + 128 + 16 - 30}')
    a(f's_mul_i32 s{sT0}, s{sHF}, {4 * UCP}')
    a(f's_add_u32 s{sT0}, s{sT0}, s{sUb}')
    a(f'v_lshlrev_b32 v{vSw}, 4, v{vL}')
    for rho in range(4):
        for q in range(4):
            a(f's_add_u32 s{sT3}, s{sT2}, {2*rho + 1024*q}')
            a(f's_add_u32 m0, s{sT0}, {rho * UCP + 16 + 1024 * q}')
            a(f'buffer_load_dwordx4 v{vSw}, {sr(sWS,4)}, s{sT3} offen lds')
    for r in range(4): a(f'v_mov_b32 v{vt+r}, 0')
    a(f'v_mul_u32_u24 v{vTm}, {UCP}, v{vL}')
    a(f'v_add_u32 v{vTm}, s{sT0}, v{vTm}')
    a('s_mov_b64 exec, 15')
    a(f'ds_write_b128 v{vTm}, {vr(vt,4)}')
    a('s_mov_b32 exec_lo, -1')
    a(f'v_add_u32 v{vTm}, s{sKb}, v{vSw}')
    a(f'ds_write_b128 v{vTm}, {vr(vt,4)} offset:4096')
    a('s_mov_b64 exec, -1')
    a('s_barrier')
    a(f'v_lshl_add_u32 v{vSw}, v{vL}, 2, s{sSt}')
    a(f'v_mul_u32_u24 v{vSr}, {SP}, v{vI}')
    a(f'v_lshl_add_u32 v{vSr}, v{vG}, 4, v{vSr}')
    a(f'v_add_u32 v{vSr}, s{sSt}, v{vSr}')
    a('s_waitcnt lgkmcnt(0)')
    a(f's_lshl_b32 s{sT0}, s{sCH}, 4')
    a(f's_lshr_b32 s{sT1}, s{sT1}, s{sT0}')
    a(f's_lshl_b32 s{sT1}, s{sT1}, 16')
    a(f's_lshr_b32 s{sDk}, s{sDk}, s{sT0}')
    a(f's_lshl_b32 s{sDk}, s{sDk}, 16')
    LOG2E = math.log2(math.e)
    hi = struct.unpack('<f', struct.pack('<f', LOG2E))[0]; lo = LOG2E - hi
    a(f'v_mov_b32 v{vt}, s{sT1}')
    a(f'v_mul_f32 v{vt+1}, {fl(hi)}, v{vt}')
    a(f'v_mov_b32 v{vt+3}, {fl(hi)}')
    a(f'v_fma_f32 v{vt+2}, v{vt}, v{vt+3}, -v{vt+1}')
    a(f'v_fmamk_f32 v{vt+2}, v{vt}, {fl(lo)}, v{vt+2}')
    a(f'v_exp_f32 v{vt+1}, v{vt+1}')
    a(f'v_mul_f32 v{vt+2}, {fl(math.log(2.0))}, v{vt+2}')
    a(f'v_fma_f32 v{vt+1}, v{vt+1}, v{vt+2}, v{vt+1}')
    a(f'v_cvt_pk_bf16_f32 v{vt+1}, v{vt+1}, v{vt+1}')
    a(f'v_and_b32 v{vt+1}, 0xffff0000, v{vt+1}')
    a('s_waitcnt vmcnt(16)')
    for k in range(6): a(f'v_lshlrev_b32 v{vP+k}, 16, v{vP+k}')
    for k in range(4): a(f'v_mul_f32 v{vP+k}, v{vt+1}, v{vP+k}')
    a(f'v_mul_f32 v{vA2}, {fl(LOG2E)}, v{vP}')
    a(f'v_mul_f32 v{vBr}, 0.15915494, v{vP+1}')
    a(f'v_mul_f32 v{vt}, v{vP+5}, v{vP+3}')
    a(f'v_mul_f32 v{vt+1}, v{vP+5}, v{vP+2}')
    a(f'v_fma_f32 v{vE}, v{vP+4}, v{vP+2}, -v{vt}')
    a(f'v_fma_f32 v{vE+1}, v{vP+4}, v{vP+3}, v{vt+1}')
    for k, (dst, l) in enumerate(((vL8, 8.0), (vL1, 1.0), (vP1, 128.0))):
        a(f'v_mul_f32 v{vt+2*k}, {fl(l)}, v{vA2}')
        a(f'v_mul_f32 v{vt+2*k+1}, {fl(l)}, v{vBr}')
    for k in range(3):
        a(f'v_exp_f32 v{vt+2*k}, v{vt+2*k}')
        a(f'v_fract_f32 v{vt+2*k+1}, v{vt+2*k+1}')
    for k, dst in enumerate((vL8, vL1, vP1)):
        a(f'v_cos_f32 v{dst}, v{vt+2*k+1}')
        a(f'v_sin_f32 v{dst+1}, v{vt+2*k+1}')
    for k, dst in enumerate((vL8, vL1, vP1)):
        a(f'v_mul_f32 v{dst}, v{dst}, v{vt+2*k}')
        a(f'v_mul_f32 v{dst+1}, v{dst+1}, v{vt+2*k}')
    tsel = [0]
    def cmul(d, x, y):
        t = vt + 2 * (tsel[0] & 3); tsel[0] += 1
        a(f'v_pk_mul_f32 {vr(t,2)}, {vr(x,2)}, {vr(y,2)} op_sel:[1,1] op_sel_hi:[1,0]')
        a(f'v_pk_fma_f32 {vr(d,2)}, {vr(x,2)}, {vr(y,2)}, {vr(t,2)} op_sel:[0,0,0] op_sel_hi:[0,1,1] neg_lo:[0,0,1]')
    qsel = [0]
    def put(row, x, neg):
        q = vQ + (qsel[0] % 12); qsel[0] += 1
        a(f'v_cvt_pk_bf16_f32 v{q}, v{x}, {"-" if neg else ""}v{x+1}')
        a(f'ds_write_b32 v{vSw}, v{q} offset:{row * SP}')
    a(f'v_mov_b32 v{vQ+11}, 0x3f80')
    a(f'ds_write_b32 v{vSw}, v{vQ+11}')
    put(1, vL8, False)
    put(16, vP1, False)
    for j in range(2, 16):
        cmul(vY, vL8 if j == 2 else vY, vL8)
        if j - 1 <= 7: cmul(vE + 2*(j-1), vE + 2*(j-2), vL1)
        put(j, vY, False)
    for k in range(4):
        a(f'ds_read_b128 {vr(vYf+4*k,4)}, v{vSr} offset:{64*k}')
        a(f'ds_read_b128 {vr(vYf+16+4*k,4)}, v{vSr} offset:{64*k + SP}')
    def xround(tile, both):
        for k in range(4): a(f'ds_read_b128 {vr(vXf+4*k,4)}, v{vSr} offset:{64*k}')
    def xmfma(dsts):
        for k in range(4):
            for di, d in enumerate(dsts):
                c = '0' if k == 0 else vr(d, 4)
                a(f'v_mfma_f32_16x16x32_bf16 {vr(d,4)}, {vr(vXf+4*k,4)}, {vr(vYf+16*di+4*k,4)}, {c}')
    for e in range(8): put(e, vE + 2*e, True)
    for e in range(8):
        cmul(vE + 2*e, vE + 2*e, vP1); put(8 + e, vE + 2*e, True)
    xround(0, False)
    for i in (2, 3):
        for k, e in enumerate((0, 2, 4, 6)):
            cmul(vE + 2*e, vE + 2*e, vP1); put(4*(i-2) + k, vE + 2*e, True)
    a('s_waitcnt lgkmcnt(8)')
    xmfma([vD])
    for i in (4, 5, 6, 7):
        for k, e in enumerate((0, 4)):
            cmul(vE + 2*e, vE + 2*e, vP1); put(8 + 2*(i-4) + k, vE + 2*e, True)
    xround(1, True)
    for i in range(8, 16):
        cmul(vE, vE, vP1); put(4*((i-8)//2) + ((i-8) & 1), vE, True)
    a('s_waitcnt lgkmcnt(8)')
    xmfma([vD + 4, vD + 8])
    xround(2, True)
    a('s_waitcnt lgkmcnt(0)')
    xmfma([vD + 12, vD + 16])
    a(f'v_lshl_add_u32 v{vSw}, v{vL}, 4, s{sSt}')
    a(f's_xor_b32 s{sT0}, s{sWV}, 1')
    a(f's_sub_u32 s{sT0}, s{sT0}, 4')
    a(f's_mul_i32 s{sT0}, s{sT0}, {L_STGW}')
    a(f's_add_u32 s{sT0}, s{sT0}, {L_STG}')
    a(f'v_lshl_add_u32 v{vSr}, v{vL}, 4, s{sT0}')
    for k in range(5): a(f'ds_write_b128 v{vSw}, {vr(vD+4*k,4)} offset:{1024*k}')
    signal(1)
    waitflag(1, 1)
    for k in range(5): a(f'ds_read_b128 {vr(vYf+4*k,4)}, v{vSr} offset:{1024*k}')
    vKa = vA2
    a(f'v_lshlrev_b32 v{vKa}, 4, v{vI}')
    a(f'v_sub_u32 v{vKa}, s{sKb}, v{vKa}')
    a('s_waitcnt lgkmcnt(0)')
    for k in range(20): a(f'v_add_f32 v{vD+k}, v{vD+k}, v{vYf+k}')
    a(f's_cmp_eq_u32 s{sHF}, 0')
    a.fence()
    a('s_cbranch_scc0 K2_EXP1')
    h1 = list(a.hist)
    a(f'v_lshrrev_b32 v{vt}, 1, v{vG}')
    a(f'v_lshlrev_b32 v{vt}, 8, v{vt}')
    a(f'v_and_b32 v{vt+1}, 1, v{vG}')
    a(f'v_lshl_add_u32 v{vt}, v{vt+1}, 3, v{vt}')
    a(f'v_sub_u32 v{vt}, v{vKa}, v{vt}')
    a(f'v_cvt_pk_bf16_f32 v{vQ}, v{vD+3}, v{vD+2}')
    a(f'v_cvt_pk_bf16_f32 v{vQ+1}, v{vD+1}, v{vD}')
    a(f'ds_write_b64 v{vt}, {vr(vQ,2)} offset:4088')
    T, Tp = vD + 4, vD + 8
    a(f'v_lshlrev_b32 v{vt+2}, 8, v{vG}')
    a(f'v_sub_u32 v{vt+2}, v{vKa}, v{vt+2}')
    a(f'v_cvt_pk_bf16_f32 v{vQ+4}, v{Tp}, v{T+3}')
    a(f'v_cvt_pk_bf16_f32 v{vQ+5}, v{T+2}, v{T+2}')
    a(f'v_cvt_pk_bf16_f32 v{vQ+6}, v{T+2}, v{T+1}')
    a(f'v_cvt_pk_bf16_f32 v{vQ+7}, v{T}, v{T}')
    a('s_mov_b32 exec_hi, 0')
    a(f'ds_write_b128 v{vt+2}, {vr(vQ+4,4)} offset:{4080-512}')
    a('s_mov_b32 exec_hi, -1')
    a(f'v_lshlrev_b32 v{vt+3}, 9, v{vG}')
    a(f'v_sub_u32 v{vt+3}, v{vKa}, v{vt+3}')
    for k in range(2):
        q = vXf + 4*k
        a(f'v_cvt_pk_bf16_f32 v{q}, v{Tp+2*k}, v{Tp+2*k}')
        a(f'v_cvt_pk_bf16_f32 v{q+1}, v{T+2*k+1}, v{T+2*k+1}')
        a(f'v_cvt_pk_bf16_f32 v{q+2}, v{T+2*k+1}, v{T+2*k}')
        a(f'v_cvt_pk_bf16_f32 v{q+3}, v{T+2*k}, v{T+2*k}')
    a('s_mov_b32 exec_lo, 0')
    for k in range(2): a(f'ds_write_b128 v{vt+3}, {vr(vXf+4*k,4)} offset:{4080-256*k}')
    a('s_mov_b32 exec_lo, -1')
    a('s_branch K2_EXPD')
    a.label('K2_EXP1'); a.hist = h1
    T, Tp = vD + 12, vD + 16
    a(f'v_lshlrev_b32 v{vt+3}, 9, v{vG}')
    a(f'v_sub_u32 v{vt+3}, v{vKa}, v{vt+3}')
    a(f'v_and_b32 v{vt}, 1, v{vI}')
    a(f'v_cmp_eq_u32 vcc, 1, v{vt}')
    for k in range(2):
        q = vXf + 4*k
        a(f'v_cndmask_b32 v{vt+1}, v{T+k}, v{Tp+k}, vcc')
        a(f'v_cvt_pk_bf16_f32 v{q}, v{Tp+k}, v{Tp+k}')
        a(f'v_cvt_pk_bf16_f32 v{q+1}, v{Tp+k}, v{vt+1}')
        a(f'v_cvt_pk_bf16_f32 v{q+2}, v{T+k}, v{T+k}')
        a(f'v_cvt_pk_bf16_f32 v{q+3}, v{T+k}, v{T+k}')
        a(f'ds_write_b128 v{vt+3}, {vr(q,4)} offset:{4080-2048-256*k}')
    a.fence()
    a.label('K2_EXPD')
    a('s_waitcnt vmcnt(0)')
    signal(2)
    waitflag(1, 2)
    V2 = Alloc(7 + 4)
    vUa, vKr = 7, 8
    vSw2, vSr2 = 9, 10
    a(f'v_mov_b32 v{vSw2}, v{vSw}')
    a(f'v_mov_b32 v{vSr2}, v{vSr}')
    vAc = V2(32, 4)
    vAf = V2(64, 4)
    vBf = V2(64, 4)
    vt2 = V2(8, 4)
    a(f'v_and_b32 v{vt2}, 7, v{vI}')
    a(f'v_mul_u32_u24 v{vt2}, {UCP}, v{vt2}')
    a(f'v_lshrrev_b32 v{vt2+1}, 3, v{vI}')
    a(f'v_add_u32 v{vt2+1}, v{vt2+1}, v{vG}')
    a(f'v_lshl_add_u32 v{vt2}, v{vt2+1}, 4, v{vt2}')
    a(f's_lshl_b32 s{sT0}, s{sHF}, 8')
    a(f's_add_u32 s{sT1}, s{sT0}, s{sUb}')
    a(f'v_add_u32 v{vUa}, s{sT1}, v{vt2}')
    a(f'v_lshlrev_b32 v{vt2}, 1, v{vI}')
    a(f'v_sub_u32 v{vt2}, v{vG}, v{vt2}')
    a(f'v_lshlrev_b32 v{vt2}, 4, v{vt2}')
    a(f's_add_u32 s{sT1}, s{sT0}, s{sKb}')
    a(f's_add_u32 s{sT1}, s{sT1}, {16*254 - 3584}')
    a(f'v_add_u32 v{vKr}, s{sT1}, v{vt2}')
    def ld(rp, k):
        buf = rp & 1
        a(f'ds_read_b128 {vr(vAf+32*buf+4*k,4)}, v{vUa} offset:{64*(8*k+rp)}')
        a(f'ds_read_b128 {vr(vBf+32*buf+4*k,4)}, v{vKr} offset:{64*rp + 512*(7-k)}')
    for k in range(8): ld(0, k)
    for rp in range(4):
        buf = rp & 1
        outstanding = 16
        issued_next = 0
        for mx in range(8):
            rem = (7 - mx) * 2 + issued_next * 2
            a(f's_waitcnt lgkmcnt({min(rem, 15)})')
            pairs = [(x, y) for x in range(8) for y in range(8) if max(x, y) == mx and x + y <= 7]
            for (x, y) in pairs:
                q = x + y
                first = (rp == 0) and (q not in getattr(ld, 'seen', set()))
                if not hasattr(ld, 'seen'): ld.seen = set()
                c = '0' if first else vr(vAc+4*q, 4)
                ld.seen.add(q)
                a(f'v_mfma_f32_16x16x32_bf16 {vr(vAc+4*q,4)}, {vr(vAf+32*buf+4*x,4)}, {vr(vBf+32*buf+4*y,4)}, {c}')
            if rp < 3:
                ld(rp + 1, mx); issued_next += 1
    a(f's_cmp_eq_u32 s{sHF}, 0')
    a.fence()
    a('s_cbranch_scc0 K2_FX1')
    for k in range(4): a(f'ds_write_b128 v{vSw2}, {vr(vAc+16+4*k,4)} offset:{1024*k}')
    a('s_branch K2_FXD')
    a.label('K2_FX1')
    for k in range(4): a(f'ds_write_b128 v{vSw2}, {vr(vAc+4*k,4)} offset:{1024*k}')
    a('s_waitcnt lgkmcnt(0)')
    for k in range(16): a(f'v_mov_b32 v{vAc+k}, v{vAc+16+k}')
    a.label('K2_FXD')
    signal(3)
    waitflag(1, 3)
    for k in range(4): a(f'ds_read_b128 {vr(vAf+4*k,4)}, v{vSr2} offset:{1024*k}')
    a(f'v_lshlrev_b32 v{vt2}, 5, v{vI}')
    a(f'v_lshl_add_u32 v{vt2}, v{vG}, 3, v{vt2}')
    a(f's_lshl_b32 s{sT0}, s{sHF}, 11')
    a(f's_add_u32 s{sT1}, s{sT0}, s{sUb}')
    a(f's_add_u32 s{sT1}, s{sT1}, {7*UCP + 16}')
    a(f'v_add_u32 v{vt2+1}, s{sT1}, v{vt2}')
    for k in range(4): a(f'ds_read_b64 {vr(vBf+2*k,2)}, v{vt2+1} offset:{512*k}')
    a(f's_lshl_b32 s{sT1}, s{sD}, 12')
    a(f's_add_u32 s{sT1}, s{sT1}, s{sT0}')
    a(f's_add_u32 s{sT1}, s{sT1}, {WS_YT}')
    a('s_waitcnt lgkmcnt(0)')
    W = vBf + 16
    for k in range(4):
        c = vAc + 4*k
        for r in range(4): a(f'v_add_f32 v{c+r}, v{c+r}, v{vAf+4*k+r}')
        for q in range(2):
            a(f'v_lshlrev_b32 v{W+2*q}, 16, v{vBf+2*k+q}')
            a(f'v_and_b32 v{W+2*q+1}, 0xffff0000, v{vBf+2*k+q}')
        for r in range(4): a(f'v_mul_f32 v{W+r}, s{sDk}, v{W+r}')
        a(f'v_cvt_pk_bf16_f32 v{W+4}, v{c}, v{c+1}')
        a(f'v_cvt_pk_bf16_f32 v{W+5}, v{c+2}, v{c+3}')
        a(f'v_cvt_pk_bf16_f32 v{W+6}, v{W}, v{W+1}')
        a(f'v_cvt_pk_bf16_f32 v{W+7}, v{W+2}, v{W+3}')
        for q in range(2):
            a(f'v_lshlrev_b32 v{c+2*q}, 16, v{W+4+q}')
            a(f'v_and_b32 v{c+2*q+1}, 0xffff0000, v{W+4+q}')
            a(f'v_lshlrev_b32 v{W+2*q}, 16, v{W+6+q}')
            a(f'v_and_b32 v{W+2*q+1}, 0xffff0000, v{W+6+q}')
        for r in range(4): a(f'v_add_f32 v{c+r}, v{c+r}, v{W+r}')
        a(f'v_cvt_pk_bf16_f32 v{W+8+2*k}, v{c}, v{c+1}')
        a(f'v_cvt_pk_bf16_f32 v{W+9+2*k}, v{c+2}, v{c+3}')
        a(f'buffer_store_dwordx2 {vr(W+8+2*k,2)}, v{vt2}, {sr(sWS,4)}, s{sT1} offen offset:{512*k}')
    a.label('K2_END')
    a('s_endpgm')
    return dict(name=name, grid=256, block=512, lds=K2_LDS, vgpr=max(gemm_hi, V.hi, V2.hi), sgpr=64)
```

```python
from common import *

K3_LDS = 28 * 4096

def gen_k3(a):
    name = 'k3_kernel'
    kernel_header(a, name)
    sX, sW, sWS, sO = 12, 16, 20, 24
    sRB, sDB, sWV, sWM, sWN = 28, 29, 30, 31, 32
    sT0, sT1, sT2, sAoff, sBoff, sMw, sT0row, sXo = 33, 34, 35, 36, 37, 38, 39, 40
    a('s_cmp_ge_u32 s2, 256')
    a('s_cbranch_scc1 K3_END')
    a(f's_load_dwordx2 s[4:5], s[0:1], {KA["x"]}')
    a(f's_load_dwordx4 s[8:11], s[0:1], {KA["wout"]}')
    a(f's_load_dwordx2 s[6:7], s[0:1], {KA["ws"]}')
    V = Alloc(1)
    vL, vI, vG = V(), V(), V()
    vAoff, vBoff, vXoff = V(), V(), V()
    vT = V(8, 4)
    vTr = V(4)
    vA = V(112, 4)
    vB = V(16, 4)
    vC = V(8, 4)
    vY = V(8, 4)
    vSel = V(4, 4)
    vYA = V(8, 4)
    vX = V(4, 4)
    a(f'v_lshrrev_b32 v{vT}, 6, v0')
    a(f'v_and_b32 v{vL}, 63, v0')
    a(f'v_readfirstlane_b32 s{sWV}, v{vT}')
    a(f'v_and_b32 v{vI}, 15, v{vL}')
    a(f'v_lshrrev_b32 v{vG}, 4, v{vL}')
    a(f's_and_b32 s{sT0}, s2, 7')
    a(f's_lshr_b32 s{sT1}, s2, 3')
    a(f's_lshr_b32 s{sRB}, s{sT0}, 1')
    a(f's_lshl_b32 s{sRB}, s{sRB}, 3')
    a(f's_and_b32 s{sT2}, s{sT1}, 7')
    a(f's_add_u32 s{sRB}, s{sRB}, s{sT2}')
    a(f's_and_b32 s{sDB}, s{sT0}, 1')
    a(f's_lshl_b32 s{sDB}, s{sDB}, 2')
    a(f's_lshr_b32 s{sT2}, s{sT1}, 3')
    a(f's_add_u32 s{sDB}, s{sDB}, s{sT2}')
    a(f's_and_b32 s{sWM}, s{sWV}, 3')
    a(f's_lshr_b32 s{sWN}, s{sWV}, 2')
    a(f's_lshl_b32 s{sT0row}, s{sRB}, 6')
    a(f's_lshl_b32 s{sT0}, s{sWM}, 4')
    a(f's_add_u32 s{sT0row}, s{sT0row}, s{sT0}')
    a(f's_mul_i32 s{sAoff}, s{sT0row}, 1792')
    a(f's_add_u32 s{sAoff}, s{sAoff}, {WS_H}')
    a(f's_lshl_b32 s{sBoff}, s{sWN}, 15')
    a(f's_lshl_b32 s{sT0}, s{sDB}, 7')
    a(f's_add_u32 s{sBoff}, s{sBoff}, s{sT0}')
    a(f's_lshl_b32 s{sMw}, s{sWV}, 10')
    a(f'v_mul_u32_u24 v{vAoff}, 1792, v{vI}')
    a(f'v_lshl_add_u32 v{vAoff}, v{vG}, 4, v{vAoff}')
    a(f'v_lshrrev_b32 v{vT}, 3, v{vL}')
    a(f'v_and_b32 v{vT+1}, 3, v{vT}')
    a(f'v_and_b32 v{vT+2}, 4, v{vT}')
    a(f'v_lshl_add_u32 v{vT+1}, v{vT+2}, 1, v{vT+1}')
    a(f's_and_b32 s{sT0}, s{sWM}, 1')
    a(f's_lshl_b32 s{sT0}, s{sT0}, 2')
    a(f's_and_b32 s{sT1}, s{sWM}, 2')
    a(f's_lshl_b32 s{sT1}, s{sT1}, 3')
    a(f's_or_b32 s{sT0}, s{sT0}, s{sT1}')
    a(f'v_or_b32 v{vT+1}, s{sT0}, v{vT+1}')
    a(f'v_lshlrev_b32 v{vBoff}, 10, v{vT+1}')
    a(f'v_lshrrev_b32 v{vT+2}, 1, v{vT}')
    a(f'v_lshrrev_b32 v{vT+3}, 1, v{vL}')
    a(f'v_xor_b32 v{vT+2}, v{vT+2}, v{vT+3}')
    a(f'v_and_b32 v{vT+2}, 3, v{vT+2}')
    a(f'v_lshl_add_u32 v{vBoff}, v{vT+2}, 5, v{vBoff}')
    a(f'v_and_b32 v{vT+2}, 1, v{vL}')
    a(f'v_lshl_add_u32 v{vBoff}, v{vT+2}, 4, v{vBoff}')
    a('s_waitcnt lgkmcnt(0)')
    srd(a, sX, 4, 2048 * 1024)
    srd(a, sW, 8, 896 * 1024)
    srd(a, sWS, 6, WS_END)
    srd(a, sO, 10, 2048 * 1024)
    vm = VM()
    for s in range(7):
        for c in range(4):
            ks = 4*s + c
            a(f'buffer_load_dwordx4 {vr(vA+4*ks,4)}, v{vAoff}, {sr(sWS,4)}, s{sAoff} offen offset:{64*ks}')
            vm.add('S%d' % s)
        for m in (2*s, 2*s+1):
            a(f's_add_u32 s{sT0}, s{sBoff}, {m * 65536}')
            a(f's_add_u32 m0, s{sMw}, {m * 8192}')
            a(f'buffer_load_dwordx4 v{vBoff}, {sr(sW,4)}, s{sT0} offen lds')
            vm.add('S%d' % s)
    a(f's_lshl_b32 s{sT0}, s{sDB}, 6')
    a(f's_lshl_b32 s{sT1}, s{sWN}, 5')
    a(f's_add_u32 s{sT0}, s{sT0}, s{sT1}')
    a(f's_lshl_b32 s{sT1}, s{sT0}, 12')
    a(f's_and_b32 s{sT2}, s{sT0row}, 0xffffffe0')
    a(f's_lshl_b32 s{sT2}, s{sT2}, 1')
    a(f's_add_u32 s{sT1}, s{sT1}, s{sT2}')
    a(f's_add_u32 s{sT1}, s{sT1}, {WS_YT}')
    a(f's_add_u32 s{sT2}, s{sT1}, {16 * 4096}')
    a(f'v_lshlrev_b32 v{vT}, 12, v{vI}')
    a(f'v_lshl_add_u32 v{vT}, v{vG}, 4, v{vT}')
    a(f'buffer_load_dwordx4 {vr(vY,4)}, v{vT}, {sr(sWS,4)}, s{sT1} offen'); vm.add('E')
    a(f'buffer_load_dwordx4 {vr(vY+4,4)}, v{vT}, {sr(sWS,4)}, s{sT2} offen'); vm.add('E')
    a(f's_lshl_b32 s{sXo}, s{sT0row}, 10')
    a(f's_lshl_b32 s{sT0}, s{sT0}, 1')
    a(f's_add_u32 s{sXo}, s{sXo}, s{sT0}')
    a(f'v_lshlrev_b32 v{vXoff}, 10, v{vI}')
    a(f'v_lshl_add_u32 v{vXoff}, v{vG}, 3, v{vXoff}')
    a(f'buffer_load_dwordx2 {vr(vX,2)}, v{vXoff}, {sr(sX,4)}, s{sXo} offen'); vm.add('E')
    a(f'buffer_load_dwordx2 {vr(vX+2,2)}, v{vXoff}, {sr(sX,4)}, s{sXo} offen offset:32'); vm.add('E')
    a(f'v_lshrrev_b32 v{vT}, 2, v{vI}')
    a(f'v_and_b32 v{vT+1}, 1, v{vG}')
    a(f'v_lshl_add_u32 v{vT}, v{vT+1}, 2, v{vT}')
    a(f'v_lshrrev_b32 v{vT+2}, 1, v{vT}')
    a(f'v_lshrrev_b32 v{vT+1}, 1, v{vG}')
    a(f'v_lshl_add_u32 v{vT}, v{vT+1}, 4, v{vT}')
    a(f'v_lshlrev_b32 v{vT}, 7, v{vT}')
    a(f'v_and_b32 v{vT+1}, 3, v{vI}')
    a(f'v_lshl_add_u32 v{vT}, v{vT+1}, 3, v{vT}')
    a(f's_lshl_b32 s{sT0}, s{sWN}, 1')
    for t in range(2):
        a(f's_add_u32 s{sT1}, s{sT0}, {t}')
        a(f'v_xor_b32 v{vT+3}, s{sT1}, v{vT+2}')
        a(f'v_lshl_add_u32 v{vTr+t}, v{vT+3}, 5, v{vT}')
        a(f'v_add_u32 v{vTr+2+t}, 0x10000, v{vTr+t}')
    sel_frag(a, vSel, vI, vG, vT, 0)
    sel_frag(a, vYA, vI, vG, vT, 1)
    a(f's_bitcmp1_b32 s{sWM}, 0')
    a(f's_cselect_b64 vcc, -1, 0')
    for j in range(4): a(f'v_cndmask_b32 v{vSel+j}, v{vSel+j}, v{vYA+j}, vcc')
    for i in range(8): a(f'v_mov_b32 v{vC+i}, 0')
    def reads(j, bs):
        for t in range(2):
            base = vTr + t + (2 if j >= 16 else 0)
            off = (j & 15) * 4096
            for h in range(2):
                a(f'ds_read_b64_tr_b16 {vr(vB+8*bs+4*t+2*h,2)}, v{base} offset:{off + h*1024}')
    for s in range(7):
        vm.wait(a, 'S%d' % s)
        a('s_barrier')
        reads(4*s, 0)
        for c in range(4):
            j = 4*s + c
            if c < 3:
                reads(j + 1, (c + 1) & 1)
                a('s_waitcnt lgkmcnt(4)')
            else:
                a('s_waitcnt lgkmcnt(0)')
            for t in range(2):
                a(f'v_mfma_f32_16x16x32_bf16 {vr(vC+4*t,4)}, {vr(vB+8*(c&1)+4*t,4)}, {vr(vA+4*j,4)}, {vr(vC+4*t,4)}')
    a('s_waitcnt vmcnt(0)')
    for t in range(2):
        a(f'v_mfma_f32_16x16x32_bf16 {vr(vYA+4*t,4)}, {vr(vY+4*t,4)}, {vr(vSel,4)}, 0')
    U = vA
    for t in range(2):
        for q in range(2):
            a(f'v_lshlrev_b32 v{U+4*t+2*q}, 16, v{vX+2*t+q}')
            a(f'v_and_b32 v{U+4*t+2*q+1}, 0xffff0000, v{vX+2*t+q}')
    for q in range(4): a(f'v_cvt_pk_bf16_f32 v{U+8+q}, v{vC+2*q}, v{vC+2*q+1}')
    for i in range(8): a(f'v_add_f32 v{U+i}, v{U+i}, v{vYA+i}')
    for q in range(4): a(f'v_cvt_pk_bf16_f32 v{U+12+q}, v{U+2*q}, v{U+2*q+1}')
    for q in range(4):
        a(f'v_lshlrev_b32 v{U+2*q}, 16, v{U+12+q}')
        a(f'v_and_b32 v{U+2*q+1}, 0xffff0000, v{U+12+q}')
        a(f'v_lshlrev_b32 v{vC+2*q}, 16, v{U+8+q}')
        a(f'v_and_b32 v{vC+2*q+1}, 0xffff0000, v{U+8+q}')
    for i in range(8): a(f'v_add_f32 v{U+i}, v{U+i}, v{vC+i}')
    for q in range(4): a(f'v_cvt_pk_bf16_f32 v{U+8+q}, v{U+2*q}, v{U+2*q+1}')
    a(f'buffer_store_dwordx2 {vr(U+8,2)}, v{vXoff}, {sr(sO,4)}, s{sXo} offen')
    a(f'buffer_store_dwordx2 {vr(U+10,2)}, v{vXoff}, {sr(sO,4)}, s{sXo} offen offset:32')
    a.label('K3_END')
    a('s_endpgm')
    return dict(name=name, grid=256, block=512, lds=K3_LDS, vgpr=V.hi, sgpr=48)
```

```python
import sys
from common import *
from k1 import gen_k1
from k2 import gen_k2
from k3 import gen_k3

HEAD = open('parallel_sum__ssm_conv_s4__mixer_gmlp__prompt.s.ref').read().split('; Override launch')[0]

def build(path):
    a = Asm()
    infos = [gen_k1(a), gen_k2(a), gen_k3(a)]
    out = HEAD
    for i in infos:
        out += f'; @launch kernel={i["name"]} grid=({i["grid"]},1,1) block=({i["block"]},1,1) lds={i["lds"]}\n'
    out += '.amdgcn_target "amdgcn-amd-amdhsa--gfx950"\n.text\n'
    out += a.text()
    out += '.section .rodata,"a"\n'
    for i in infos:
        out += kd(i['name'], i['vgpr'], i['sgpr']) + '\n'
    open(path, 'w').write(out)
    print(infos, 'instrs', a.ninstr)

if __name__ == '__main__':
    build(sys.argv[1] if len(sys.argv) > 1 else 'parallel_sum__ssm_conv_s4__mixer_gmlp__prompt.s')
```

```python
from asmlib import *
import struct, math

def f2u(x): return struct.unpack('<I', struct.pack('<f', x))[0]
def hx(x): return '0x%08x' % (x & 0xffffffff)
def fl(x): return hx(f2u(x))

KA = dict(x=0, are=8, aim=16, bre=24, bim=32, cre=40, cim=48, ldt=56, dsk=64, bx=72, win=80, wsp=88, bsp=96, wout=104, out=112, dbg=120, ws=128)

XNT_PITCH = 4224
Z2T_PITCH = 4224
def al(x, a=4096): return (x + a - 1) // a * a
WS_XNT = 0
WS_Z1 = al(WS_XNT + 512 * XNT_PITCH)
WS_Z2F = al(WS_Z1 + 2048 * 1792)
WS_H = al(WS_Z2F + 896 * 4096)
WS_YT = al(WS_H + 2048 * 1792)
WS_ST = al(WS_YT + 512 * 4096)
WS_END = al(WS_ST + 256 * 512)

class VM:
    def __init__(self): self.ops = []
    def copy(self):
        v = VM(); v.ops = list(self.ops); return v
    def add(self, tag): self.ops.append(tag)
    def wait(self, a, *tags):
        last = -1
        for i, t in enumerate(self.ops):
            if t in tags: last = i
        assert last >= 0, tags
        n = len(self.ops) - 1 - last
        assert n <= 63
        a('s_waitcnt vmcnt(%d)' % n)
        self.ops = self.ops[last + 1:]

def srd(a, d, ptr, nbytes):
    a(f's_mov_b32 s{d}, s{ptr}')
    a(f's_and_b32 s{d+1}, s{ptr+1}, 0xffff')
    a(f's_mov_b32 s{d+2}, {hx(nbytes)}')
    a(f's_mov_b32 s{d+3}, 0x00020000')

def kernel_header(a, name):
    a.raw(f'.globl {name}\n.p2align 8\n.type {name},@function\n{name}:')
    a.hist = []

def kd(name, vgpr, sgpr=96, agpr=0):
    acc = (vgpr + 3) // 4 * 4
    nfv = acc + agpr if agpr else vgpr
    return f'''.p2align 6
.amdhsa_kernel {name}
  .amdhsa_next_free_vgpr {nfv}
  .amdhsa_next_free_sgpr {sgpr}
  .amdhsa_accum_offset {acc}
  .amdhsa_group_segment_fixed_size 0
  .amdhsa_kernarg_size 136
  .amdhsa_user_sgpr_count 2
  .amdhsa_user_sgpr_kernarg_segment_ptr 1
  .amdhsa_system_sgpr_workgroup_id_x 1
  .amdhsa_float_denorm_mode_32 3
.end_amdhsa_kernel'''

def sel_frag(a, dst, vi, vg, tmp, hi):
    t0, t1, t2 = tmp, tmp + 1, tmp + 2
    a(f'v_lshlrev_b32 v{t0}, 3, v{vg}')
    a(f'v_sub_u32 v{t0}, v{vi}, v{t0}')
    if hi: a(f'v_add_u32 v{t0}, 16, v{t0}')
    a(f'v_and_b32 v{t1}, 1, v{t0}')
    a(f'v_lshlrev_b32 v{t1}, 4, v{t1}')
    a(f'v_mov_b32 v{t2}, 0x3f80')
    a(f'v_lshlrev_b32 v{t1}, v{t1}, v{t2}')
    a(f'v_ashrrev_i32 v{t0}, 1, v{t0}')
    for j in range(4):
        a(f'v_cmp_eq_u32 vcc, {j}, v{t0}')
        a(f'v_cndmask_b32 v{dst+j}, 0, v{t1}, vcc')

GK1 = -2.0 * math.sqrt(2.0 / math.pi) * math.log2(math.e)
GK2 = GK1 * 0.044715
def gelu(a, regs, vk2, tmp):
    n = len(regs)
    for i, r in enumerate(regs): a(f'v_mul_f32 v{tmp+i}, v{r}, v{r}')
    for i, r in enumerate(regs): a(f'v_fmaak_f32 v{tmp+i}, v{vk2}, v{tmp+i}, {fl(GK1)}')
    for i, r in enumerate(regs): a(f'v_mul_f32 v{tmp+i}, v{r}, v{tmp+i}')
    for i, r in enumerate(regs): a(f'v_exp_f32 v{tmp+i}, v{tmp+i}')
    for i, r in enumerate(regs): a(f'v_add_f32 v{tmp+i}, 1.0, v{tmp+i}')
    for i, r in enumerate(regs): a(f'v_rcp_f32 v{tmp+i}, v{tmp+i}')
    for i, r in enumerate(regs): a(f'v_mul_f32 v{r}, v{r}, v{tmp+i}')

def ln_finalize(a, S, Q, n, negm, rinv, t):
    k = len(S)
    inv = fl(1.0 / n)
    for i in range(k): a(f'v_mul_f32 v{S[i]}, {inv}, v{S[i]}')
    for i in range(k): a(f'v_mul_f32 v{Q[i]}, {inv}, v{Q[i]}')
    for i in range(k): a(f'v_fma_f32 v{Q[i]}, -v{S[i]}, v{S[i]}, v{Q[i]}')
    for i in range(k): a(f'v_max_f32 v{Q[i]}, 0, v{Q[i]}')
    for i in range(k): a(f'v_cvt_pk_bf16_f32 v{t+i}, v{S[i]}, v{Q[i]}')
    for i in range(k): a(f'v_lshlrev_b32 v{negm[i]}, 16, v{t+i}')
    for i in range(k): a(f'v_xor_b32 v{negm[i]}, 0x80000000, v{negm[i]}')
    for i in range(k): a(f'v_and_b32 v{t+i}, 0xffff0000, v{t+i}')
    for i in range(k): a(f'v_add_f32 v{t+i}, {fl(1e-5)}, v{t+i}')
    for i in range(k): a(f'v_cvt_pk_bf16_f32 v{t+i}, v{t+i}, v{t+i}')
    for i in range(k): a(f'v_and_b32 v{t+i}, 0xffff0000, v{t+i}')
    for i in range(k): a(f'v_sqrt_f32 v{t+i}, v{t+i}')
    for i in range(k): a(f'v_cvt_pk_bf16_f32 v{t+i}, v{t+i}, v{t+i}')
    for i in range(k): a(f'v_and_b32 v{t+i}, 0xffff0000, v{t+i}')
    for i in range(k): a(f'v_rcp_f32 v{rinv[i]}, v{t+i}')

import os
PROFILE = int(os.environ.get('PROFILE', '0'))
WS_PROF = al(WS_END)
class Prof:
    def __init__(self, a, kidx): self.a = a; self.n = 0; self.k = kidx
    def fork(self):
        p = Prof(self.a, self.k); p.n = self.n; return p
    def stamp(self):
        if not PROFILE: return
        assert self.n < 14
        if self.n == 0: self.a('s_memrealtime s[92:93]')
        self.a(f's_memtime s[{64+2*self.n}:{65+2*self.n}]'); self.n += 1
    def dump(self, sWSptr, sWV, vt):
        if not PROFILE: return
        a = self.a
        a('s_memrealtime s[94:95]')
        a('s_getreg_b32 s97, hwreg(HW_REG_XCC_ID)')
        a('s_getreg_b32 s98, hwreg(HW_REG_HW_ID)')
        a('s_waitcnt lgkmcnt(0)')
        a(f's_lshl_b32 s96, s2, 3')
        a(f's_add_u32 s96, s96, s{sWV}')
        a(f's_lshl_b32 s96, s96, 7')
        a(f's_add_u32 s96, s96, {WS_PROF + self.k * 262144}')
        a('s_mov_b64 exec, 1')
        a(f'v_mov_b32 v{vt}, s96')
        for i in range(16):
            a(f'v_mov_b32 v{vt+1}, s{64+2*i}' if (i < self.n or i >= 14) else f'v_mov_b32 v{vt+1}, 0')
            a(f'global_store_dword v{vt}, v{vt+1}, s[{sWSptr}:{sWSptr+1}] offset:{4*i}')
        for i in range(2):
            a(f'v_mov_b32 v{vt+1}, s{97+i}')
            a(f'global_store_dword v{vt}, v{vt+1}, s[{sWSptr}:{sWSptr+1}] offset:{64+4*i}')
```

```python
from common import *

SLOT = 8192
NSLOT = 19
L_MISC = NSLOT * SLOT
L_PART = L_MISC
L_FIN = L_MISC + 2048
L_TRN = L_MISC + 2560
K1_LDS = L_MISC + 4096
L_XN = 11 * SLOT

def gen_k1(a):
    name = 'k1_kernel'
    kernel_header(a, name)
    sX, sW, sWS, sD = 12, 16, 20, 24
    sRB, sCG, sWV, sWM, sJ, sTY = 28, 29, 30, 31, 32, 33
    sT0, sT1, sT2, sCol2, sCol1, sMw = 34, 35, 36, 37, 38, 39
    sMk2, sMk1 = 40, 42
    sTb2, sTb1 = 44, 45
    sG2, sG1 = 46, 47
    sN = 48
    a('s_cmp_ge_u32 s2, 256')
    a('s_cbranch_scc1 K1_END')
    pf = Prof(a, 0); pf.stamp()
    a(f's_load_dwordx2 s[4:5], s[0:1], {KA["x"]}')
    a(f's_load_dwordx2 s[6:7], s[0:1], {KA["win"]}')
    a(f's_load_dwordx4 s[8:11], s[0:1], {KA["dbg"]}')
    V = Alloc(1)
    vL, vI, vG = V(), V(), V()
    vXoff, vBoff = V(), V()
    vK2, vOnes = V(), V()
    vT = V(8, 4)
    vTr = V(6)
    vTrb = V(2)
    vA = V(128, 4)
    vB = V(16, 4)
    vC2 = V(16, 4)
    vC1 = V(16, 4)
    vP = V(8, 4)
    vS = V(16, 4)
    vU = V(16, 4)
    vX = vA + 64
    a(f'v_lshrrev_b32 v{vT}, 6, v0')
    a(f'v_and_b32 v{vL}, 63, v0')
    a(f'v_readfirstlane_b32 s{sWV}, v{vT}')
    a(f'v_and_b32 v{vI}, 15, v{vL}')
    a(f'v_lshrrev_b32 v{vG}, 4, v{vL}')
    a(f's_and_b32 s{sT0}, s2, 7')
    a(f's_lshr_b32 s{sT1}, s2, 3')
    a(f's_lshr_b32 s{sRB}, s{sT0}, 1')
    a(f's_lshl_b32 s{sRB}, s{sRB}, 3')
    a(f's_and_b32 s{sT2}, s{sT1}, 7')
    a(f's_add_u32 s{sRB}, s{sRB}, s{sT2}')
    a(f's_and_b32 s{sCG}, s{sT0}, 1')
    a(f's_lshl_b32 s{sCG}, s{sCG}, 2')
    a(f's_lshr_b32 s{sT2}, s{sT1}, 3')
    a(f's_add_u32 s{sCG}, s{sCG}, s{sT2}')
    a(f's_lshr_b32 s{sWM}, s{sWV}, 2')
    a(f's_and_b32 s{sJ}, s{sWV}, 3')
    a(f's_and_b32 s{sTY}, s{sCG}, 1')
    a(f'v_lshlrev_b32 v{vXoff}, 10, v{vG}')
    a(f'v_lshl_add_u32 v{vXoff}, v{vI}, 4, v{vXoff}')
    a(f's_lshl_b32 s{sT0}, s{sRB}, 16')
    a(f's_lshl_b32 s{sT1}, s{sWV}, 13')
    a(f's_add_u32 s{sT2}, s{sT0}, s{sT1}')
    a('s_waitcnt lgkmcnt(0)')
    srd(a, sX, 4, 2048 * 1024)
    vm = VM()
    a(f's_add_u32 s{sT1}, s{sT2}, 4096')
    for grp in range(2):
        for q in range(4):
            a(f'buffer_load_dwordx4 {vr(vX+16*grp+4*q,4)}, v{vXoff}, {sr(sX,4)}, s{sT2 if grp == 0 else sT1} offen offset:{256*q}')
            vm.add('X')
    srd(a, sW, 6, 512 * 3584)
    srd(a, sWS, 10, WS_END)
    srd(a, sD, 8, 256)
    a(f's_lshr_b32 s{sT0}, s{sCG}, 1')
    a(f's_mul_i32 s{sT0}, s{sT0}, 14')
    a(f's_add_u32 s{sT1}, s{sT0}, 8')
    a(f's_cmp_eq_u32 s{sTY}, 0')
    a(f's_cselect_b32 s{sG2}, s{sT0}, s{sT1}')
    a(f's_cselect_b32 s{sG1}, s{sT1}, s{sT0}')
    a(f's_lshl_b32 s{sCol1}, s{sG1}, 5')
    a(f's_lshl_b32 s{sCol2}, s{sG2}, 5')
    a(f's_add_u32 s{sCol2}, s{sCol2}, 1792')
    a(f's_lshl_b32 s{sMw}, s{sWV}, 10')
    a(f's_and_b32 s{sT0}, s{sWV}, 1')
    a(f's_lshl_b32 s{sT1}, s{sT0}, 2')
    a(f'v_or_b32 v{vT}, s{sT1}, v{vG}')
    a(f'v_lshrrev_b32 v{vT+1}, 1, v{vI}')
    a(f'v_xor_b32 v{vT+1}, v{vT+1}, v{vT}')
    a(f's_lshl_b32 s{sT0}, s{sT0}, 3')
    a(f's_and_b32 s{sT1}, s{sWV}, 2')
    a(f's_lshl_b32 s{sT1}, s{sT1}, 1')
    a(f's_or_b32 s{sT0}, s{sT0}, s{sT1}')
    a(f's_and_b32 s{sT1}, s{sWV}, 4')
    a(f's_lshl_b32 s{sT1}, s{sT1}, 2')
    a(f's_or_b32 s{sT0}, s{sT0}, s{sT1}')
    a(f'v_or_b32 v{vT}, s{sT0}, v{vG}')
    a(f'v_mul_u32_u24 v{vBoff}, 3584, v{vT}')
    a(f'v_lshl_add_u32 v{vBoff}, v{vT+1}, 5, v{vBoff}')
    a(f'v_and_b32 v{vT+2}, 1, v{vI}')
    a(f'v_lshl_add_u32 v{vBoff}, v{vT+2}, 4, v{vBoff}')
    a(f'v_cmp_gt_u32 vcc, 6, v{vT+1}')
    a(f's_cmp_eq_u32 s{sTY}, 0')
    a(f's_cselect_b64 {sr(sMk2,2)}, -1, vcc')
    a(f's_cselect_b64 {sr(sMk1,2)}, vcc, -1')
    def dma(a, vm, j0, j1):
        cur = None
        for j in range(j0, j1):
            mk = sMk2 if j < 16 else sMk1
            if mk != cur: a(f's_mov_b64 exec, {sr(mk,2)}'); cur = mk
            a(f's_add_u32 s{sT0}, s{sCol2 if j < 16 else sCol1}, {(j & 15) * 114688}')
            a(f's_add_u32 m0, s{sMw}, {(j % NSLOT) * SLOT}')
            a(f'buffer_load_dwordx4 v{vBoff}, {sr(sW,4)}, s{sT0} offen lds')
            vm.add('B%d' % j)
        a(f's_mov_b64 exec, -1')
    dma(a, vm, 0, 11)
    a(f's_lshl_b32 s{sT0}, s{sWM}, 1')
    a(f's_xor_b32 s{sT0}, s{sT0}, s{sJ}')
    a(f's_lshl_b32 s{sT1}, s{sT0}, 1')
    a(f's_min_u32 s{sT1}, s{sT1}, 5')
    a(f's_cmp_lt_u32 s{sT0}, 2')
    a(f's_cselect_b32 s{sN}, 1, 0')
    a(f's_lshl_b32 s{sT0}, s{sJ}, 1')
    a(f's_cmp_eq_u32 s{sTY}, 0')
    a(f's_cselect_b32 s{sTb2}, s{sT0}, s{sT1}')
    a(f's_cselect_b32 s{sTb1}, s{sT1}, s{sT0}')
    a(f'v_lshrrev_b32 v{vT}, 2, v{vI}')
    a(f'v_and_b32 v{vT+1}, 1, v{vG}')
    a(f'v_lshl_add_u32 v{vTrb+1}, v{vT+1}, 2, v{vT}')
    a(f'v_lshrrev_b32 v{vT+1}, 1, v{vG}')
    a(f'v_lshl_add_u32 v{vT}, v{vT+1}, 4, v{vTrb+1}')
    a(f'v_lshlrev_b32 v{vT}, 8, v{vT}')
    a(f'v_and_b32 v{vT+1}, 3, v{vI}')
    a(f'v_lshl_add_u32 v{vTrb}, v{vT+1}, 3, v{vT}')
    def trbases(stb):
        for t in range(2):
            a(f's_add_u32 s{sT0}, s{stb}, {t}')
            a(f'v_xor_b32 v{vT}, s{sT0}, v{vTrb+1}')
            a(f'v_lshl_add_u32 v{vTr+3*t}, v{vT}, 5, v{vTrb}')
            a(f'v_add_u32 v{vTr+3*t+1}, 0x10000, v{vTr+3*t}')
            a(f'v_add_u32 v{vTr+3*t+2}, 0x20000, v{vTr+3*t}')
    trbases(sTb2)
    a(f'v_mov_b32 v{vK2}, {fl(GK2)}')
    a(f'v_mov_b32 v{vOnes}, 0x3f803f80')
    pf.stamp()
    vm.wait(a, 'X')
    pf.stamp()
    for grp in range(2):
        for i in range(16):
            c0 = '0' if i < 2 else f'v{vS+4*grp+(i&1)}'
            c1 = '0' if i < 2 else f'v{vS+4*grp+2+(i&1)}'
            a(f'v_dot2_f32_bf16 v{vS+4*grp+(i&1)}, v{vX+16*grp+i}, v{vOnes}, {c0}')
            a(f'v_dot2_f32_bf16 v{vS+4*grp+2+(i&1)}, v{vX+16*grp+i}, v{vX+16*grp+i}, {c1}')
    for k in range(4): a(f'v_add_f32 v{vS+8+k}, v{vS+2*k}, v{vS+2*k+1}')
    for ror in (8, 4, 2, 1):
        for k in range(4):
            a(f'v_add_f32_dpp v{vS+8+k}, v{vS+8+k}, v{vS+8+k} row_ror:{ror} row_mask:0xf bank_mask:0xf')
    nm = [vS, vS + 1]; ri = [vS + 2, vS + 3]
    ln_finalize(a, [vS + 8, vS + 10], [vS + 9, vS + 11], 512, nm, ri, vT)
    a(f's_lshl_b32 s{sT0}, s{sWV}, 3')
    a(f'v_add_u32 v{vT}, s{sT0}, v{vG}')
    for grp in range(2):
        if grp: a(f'v_add_u32 v{vT}, 4, v{vT}')
        a(f'v_and_b32 v{vT+1}, 15, v{vT}')
        a(f'v_xor_b32 v{vT+1}, v{vT+1}, v{vI}')
        a(f'v_lshlrev_b32 v{vT+2+grp}, 10, v{vT}')
        a(f'v_lshl_add_u32 v{vT+2+grp}, v{vT+1}, 4, v{vT+2+grp}')
        a(f'v_add_u32 v{vT+2+grp}, {L_XN}, v{vT+2+grp}')
    G = 4
    for i0 in range(0, 32, G):
        grp = i0 // 16
        for i in range(G): a(f'v_lshlrev_b32 v{vU+2*i}, 16, v{vX+i0+i}')
        for i in range(G): a(f'v_and_b32 v{vU+2*i+1}, 0xffff0000, v{vX+i0+i}')
        for i in range(2*G): a(f'v_add_f32 v{vU+i}, v{nm[grp]}, v{vU+i}')
        for i in range(G): a(f'v_cvt_pk_bf16_f32 v{vX+i0+i}, v{vU+2*i}, v{vU+2*i+1}')
        for i in range(G): a(f'v_lshlrev_b32 v{vU+2*i}, 16, v{vX+i0+i}')
        for i in range(G): a(f'v_and_b32 v{vU+2*i+1}, 0xffff0000, v{vX+i0+i}')
        for i in range(2*G): a(f'v_mul_f32 v{vU+i}, v{ri[grp]}, v{vU+i}')
        for i in range(G): a(f'v_cvt_pk_bf16_f32 v{vX+i0+i}, v{vU+2*i}, v{vU+2*i+1}')
        a(f'ds_write_b128 v{vT+2+grp}, {vr(vX+i0,4)} offset:{256*((i0//4)&3)}')
    a(f's_lshl_b32 s{sT0}, s{sWM}, 15')
    a(f's_add_u32 s{sT0}, s{sT0}, {L_XN}')
    a(f'v_lshlrev_b32 v{vT}, 10, v{vI}')
    a(f'v_add_u32 v{vT}, s{sT0}, v{vT}')
    for k in range(4):
        a(f'v_add_u32 v{vT+1}, {4*k}, v{vG}')
        a(f'v_xor_b32 v{vT+1}, v{vT+1}, v{vI}')
        a(f'v_lshl_add_u32 v{vT+4+k}, v{vT+1}, 4, v{vT}')
    a(f'v_lshrrev_b32 v{vU}, 2, v{vI}')
    a(f'v_lshl_add_u32 v{vU}, v{vG}, 3, v{vU}')
    a(f's_lshl_b32 s{sT1}, s{sCG}, 3')
    a(f's_lshl_b32 s{sT2}, s{sJ}, 1')
    a(f's_add_u32 s{sT1}, s{sT1}, s{sT2}')
    a(f's_lshr_b32 s{sT2}, s{sT1}, 4')
    a(f's_lshl_b32 s{sT2}, s{sT2}, 8')
    a(f's_add_u32 s{sT0}, s{sT0}, s{sT2}')
    a(f's_and_b32 s{sT1}, s{sT1}, 15')
    a(f'v_bfe_u32 v{vU+1}, v{vI}, 1, 1')
    a(f'v_add_u32 v{vU+1}, s{sT1}, v{vU+1}')
    a(f'v_and_b32 v{vU+2}, 1, v{vI}')
    a(f'v_lshlrev_b32 v{vU+2}, 3, v{vU+2}')
    a(f'v_add_u32 v{vU+2}, s{sT0}, v{vU+2}')
    for h in range(2):
        if h: a(f'v_add_u32 v{vU}, 4, v{vU}')
        a(f'v_and_b32 v{vU+3}, 15, v{vU}')
        a(f'v_xor_b32 v{vU+3}, v{vU+3}, v{vU+1}')
        a(f'v_lshl_add_u32 v{vU+4+h}, v{vU+3}, 4, v{vU+2}')
        a(f'v_lshl_add_u32 v{vU+4+h}, v{vU}, 10, v{vU+4+h}')
    for i in range(16):
        a(f'v_mov_b32 v{vC2+i}, 0')
        a(f'v_mov_b32 v{vC1+i}, 0')
    a('s_waitcnt lgkmcnt(0)')
    vm.wait(a, 'B3')
    a('s_barrier')
    pf.stamp()
    a(f'ds_read_b64_tr_b16 {vr(vU+8,2)}, v{vU+4}')
    a(f'ds_read_b64_tr_b16 {vr(vU+10,2)}, v{vU+5}')
    for ks in range(16):
        for mt in range(2):
            a(f'ds_read_b128 {vr(vA+64*mt+4*ks,4)}, v{vT+4+(ks&3)} offset:{16384*mt + 256*(ks>>2)}')
    a(f'v_lshrrev_b32 v{vU}, 2, v{vL}')
    a(f'v_and_b32 v{vU+1}, 3, v{vL}')
    a(f'v_lshl_add_u32 v{vU+2}, v{vU+1}, 4, v{vU}')
    a(f'v_lshlrev_b32 v{vU+2}, 2, v{vU+2}')
    a('s_waitcnt lgkmcnt(15)')
    a('s_waitcnt lgkmcnt(0)')
    for k in range(4): a(f'ds_bpermute_b32 v{vU+12+k}, v{vU+2}, v{vU+8+k}')
    a(f'v_mul_u32_u24 v{vU+3}, {XNT_PITCH}, v{vU}')
    a(f'v_lshl_add_u32 v{vU+3}, v{vU+1}, 4, v{vU+3}')
    a(f's_lshl_b32 s{sT0}, s{sCG}, 6')
    a(f's_lshl_b32 s{sT1}, s{sJ}, 4')
    a(f's_add_u32 s{sT0}, s{sT0}, s{sT1}')
    a(f's_mul_i32 s{sT0}, s{sT0}, {XNT_PITCH}')
    a(f's_lshl_b32 s{sT1}, s{sRB}, 7')
    a(f's_add_u32 s{sT0}, s{sT0}, s{sT1}')
    a(f's_lshl_b32 s{sT1}, s{sWM}, 6')
    a(f's_add_u32 s{sT0}, s{sT0}, s{sT1}')
    a(f's_add_u32 s{sT0}, s{sT0}, {WS_XNT + 128}')
    a('s_waitcnt lgkmcnt(0)')
    a(f'buffer_store_dwordx4 {vr(vU+12,4)}, v{vU+3}, {sr(sWS,4)}, s{sT0} offen'); vm.add('st')
    a('s_barrier')
    dma(a, vm, 11, 19)
    pf.stamp()
    a(f's_cmp_eq_u32 s{sN}, 1')
    a.fence()
    a('s_cbranch_scc1 K1_P22')
    a(f's_cmp_eq_u32 s{sTY}, 0')
    a('s_cbranch_scc1 K1_P21')
    hist0 = list(a.hist)

    def path(a, vm, n2, n1, pf):
        tag = f'{n2}{n1}'
        def reads(j, bs):
            nt = n2 if j < 16 else n1
            slot = j % NSLOT
            off = (slot % 8) * SLOT
            for t in range(nt):
                for h in range(2):
                    a(f'ds_read_b64_tr_b16 {vr(vB+8*bs+4*t+2*h,2)}, v{vTr+3*t+slot//8} offset:{off + h*2048}')
        def mfmas(j, bs):
            nt = n2 if j < 16 else n1
            for t in range(nt):
                for mt in range(2):
                    aa = vr(vA + 64*mt + 4*(j & 15), 4); bb = vr(vB + 8*bs + 4*t, 4)
                    if j < 16:
                        c = vr(vC2 + 8*t + 4*mt, 4); a(f'v_mfma_f32_16x16x32_bf16 {c}, {aa}, {bb}, {c}')
                    else:
                        c = vr(vC1 + 8*t + 4*mt, 4); a(f'v_mfma_f32_16x16x32_bf16 {c}, {bb}, {aa}, {c}')
        for s in range(8):
            nt = n2 if s < 4 else n1
            if s > 0:
                if s >= 6: a('s_waitcnt vmcnt(0)'); vm.ops = []
                else: vm.wait(a, 'B%d' % (4*s+3))
                a('s_barrier')
            if s in (1, 3, 4, 6, 7): pf.stamp()
            reads(4*s, 0)
            if 1 <= s <= 3: dma(a, vm, 15 + 4*s, 19 + 4*s)
            if s == 4:
                dma(a, vm, 31, 32)
                a(f's_cmp_lg_u32 s{sWV}, 7')
                a(f's_cbranch_scc1 K1_C1{tag}')
                a(f'v_lshrrev_b32 v{vT}, 5, v{vL}')
                a(f'v_lshlrev_b32 v{vT}, 10, v{vT}')
                a(f'v_and_b32 v{vT+1}, 1, v{vG}')
                a(f'v_lshl_add_u32 v{vT}, v{vT+1}, 7, v{vT}')
                a(f'v_lshl_add_u32 v{vT}, v{vI}, 2, v{vT}')
                a(f'v_add_u32 v{vT}, {L_PART}, v{vT}')
                for j in range(4):
                    a(f'ds_read2_b32 {vr(vU+2*j,2)}, v{vT} offset0:{64*j} offset1:{64*j+16}')
                a('s_waitcnt lgkmcnt(0)')
                for j in range(1, 4):
                    a(f'v_add_f32 v{vU}, v{vU}, v{vU+2*j}')
                    a(f'v_add_f32 v{vU+1}, v{vU+1}, v{vU+2*j+1}')
                a(f's_lshl_b32 s{sT0}, s{sRB}, 3')
                a(f's_add_u32 s{sT0}, s{sT0}, s{sCG}')
                a(f's_lshl_b32 s{sT0}, s{sT0}, 9')
                a(f's_add_u32 s{sT0}, s{sT0}, {WS_ST}')
                a(f'v_lshlrev_b32 v{vT}, 3, v{vL}')
                a(f'buffer_store_dwordx2 {vr(vU,2)}, v{vT}, {sr(sWS,4)}, s{sT0} offen sc1')
                a.fence()
                a.label(f'K1_C1{tag}')
            if s == 6:
                a(f's_cmp_lg_u32 s{sWV}, 7')
                a(f's_cbranch_scc1 K1_C2{tag}')
                a(f's_mov_b64 exec, 1')
                a(f's_lshl_b32 s{sT0}, s{sRB}, 2')
                a(f'v_mov_b32 v{vT}, 1')
                a(f'v_mov_b32 v{vT+1}, 0')
                a(f'buffer_atomic_add v{vT}, v{vT+1}, {sr(sD,4)}, s{sT0} offen')
                a(f's_mov_b64 exec, -1')
                a.label(f'K1_C2{tag}')
            for c in range(4):
                j = 4*s + c
                if c < 3:
                    reads(j + 1, (c + 1) & 1)
                    a(f's_waitcnt lgkmcnt({2*nt})')
                else:
                    a('s_waitcnt lgkmcnt(0)')
                mfmas(j, c & 1)
            if s == 3:
                trbases(sTb1)
                gelu(a, [vC2 + i for i in range(8*n2)], vK2, vU)
                for k in range(8):
                    a(f'v_cvt_pk_bf16_f32 v{vP+k}, v{vC2+k}, ' + (f'v{vC2+8+k}' if n2 == 2 else '0'))
                for k in range(8):
                    a(f'v_dot2_f32_bf16 v{vS+(k&3)+8*(k>>2)}, v{vP+k}, v{vOnes}, 0')
                    a(f'v_dot2_f32_bf16 v{vS+4+(k&3)+8*(k>>2)}, v{vP+k}, v{vP+k}, 0')
                for ror in (8, 4, 2, 1):
                    for r in range(16):
                        a(f'v_add_f32_dpp v{vS+r}, v{vS+r}, v{vS+r} row_ror:{ror} row_mask:0xf bank_mask:0xf')
                a(f's_lshl_b32 s{sT0}, s{sWV}, 8')
                a(f's_add_u32 s{sT0}, s{sT0}, {L_PART}')
                a(f'v_lshl_add_u32 v{vT}, v{vG}, 4, s{sT0}')
                a(f's_mov_b32 exec_lo, 0x00010001')
                a(f's_mov_b32 exec_hi, 0x00010001')
                for k in range(4): a(f'ds_write_b128 v{vT}, {vr(vS+4*k,4)} offset:{64*k}')
                a(f's_mov_b64 exec, -1')
                a('s_waitcnt lgkmcnt(0)')
        pf.stamp()
        a(f's_cmp_lg_u32 s{sWV}, 7')
        a(f's_cbranch_scc1 K1_C3{tag}')
        a(f's_lshl_b32 s{sT0}, s{sRB}, 2')
        a(f'v_mov_b32 v{vT+1}, 0')
        a(f's_mov_b32 s{sT2}, 0')
        a.label(f'K1_POLL{tag}')
        a(f'buffer_load_dword v{vT+2}, v{vT+1}, {sr(sD,4)}, s{sT0} offen sc1')
        a('s_waitcnt vmcnt(0)')
        a(f'v_readfirstlane_b32 s{sT1}, v{vT+2}')
        a(f's_cmp_ge_u32 s{sT1}, 8')
        a(f's_cbranch_scc1 K1_GO{tag}')
        a('s_sleep 1')
        a(f's_add_u32 s{sT2}, s{sT2}, 1')
        a(f's_cmp_lt_u32 s{sT2}, 0x40000')
        a(f's_cbranch_scc1 K1_POLL{tag}')
        a.label(f'K1_GO{tag}')
        a(f's_lshl_b32 s{sT0}, s{sRB}, 12')
        a(f's_add_u32 s{sT0}, s{sT0}, {WS_ST}')
        a(f'v_lshlrev_b32 v{vT}, 3, v{vL}')
        for c in range(8):
            a(f'buffer_load_dwordx2 {vr(vS+2*c,2)}, v{vT}, {sr(sWS,4)}, s{sT0} offen offset:{512*c} sc1')
        a.fence()
        a.label(f'K1_C3{tag}')
        gelu(a, [vC1 + i for i in range(8*n1)], vK2, vU)
        a(f's_lshl_b32 s{sT0}, s{sRB}, 2')
        a(f's_lshl_b32 s{sT1}, s{sWM}, 1')
        a(f's_add_u32 s{sT0}, s{sT0}, s{sT1}')
        a(f's_mul_i32 s{sT0}, s{sT0}, 56')
        a(f's_add_u32 s{sT0}, s{sT0}, s{sG1}')
        a(f's_add_u32 s{sT0}, s{sT0}, s{sTb1}')
        a(f's_lshl_b32 s{sT0}, s{sT0}, 9')
        a(f's_add_u32 s{sT0}, s{sT0}, {WS_Z1}')
        a(f's_add_u32 s{sT1}, s{sT0}, {56 * 512}')
        a(f'v_lshlrev_b32 v{vT+4}, 3, v{vL}')
        for t in range(n1):
            for mt in range(2):
                c = vC1 + 8*t + 4*mt; q = vU + 4*t + 2*mt
                a(f'v_cvt_pk_bf16_f32 v{q}, v{c}, v{c+1}')
                a(f'v_cvt_pk_bf16_f32 v{q+1}, v{c+2}, v{c+3}')
                a(f'buffer_store_dwordx2 {vr(q,2)}, v{vT+4}, {sr(sWS,4)}, s{sT0 if mt == 0 else sT1} offen offset:{512*t}')
        nst = 2 * n1
        a(f's_cmp_lg_u32 s{sWV}, 7')
        a(f's_cbranch_scc1 K1_C4{tag}')
        a(f's_waitcnt vmcnt({nst})')
        for c in range(1, 8):
            a(f'v_add_f32 v{vS}, v{vS}, v{vS+2*c}')
            a(f'v_add_f32 v{vS+1}, v{vS+1}, v{vS+2*c+1}')
        ln_finalize(a, [vS], [vS + 1], 896, [vS + 2], [vS + 3], vT)
        a(f'v_lshlrev_b32 v{vT}, 2, v{vL}')
        a(f'v_add_u32 v{vT}, {L_FIN}, v{vT}')
        a(f'ds_write2_b32 v{vT}, v{vS+2}, v{vS+3} offset0:0 offset1:64')
        a('s_waitcnt lgkmcnt(0)')
        a.label(f'K1_C4{tag}')
        a('s_barrier')
        pf.stamp()
        a(f's_lshl_b32 s{sT0}, s{sWM}, 7')
        a(f's_add_u32 s{sT0}, s{sT0}, {L_FIN}')
        a(f'v_lshl_add_u32 v{vT}, v{vG}, 4, s{sT0}')
        for mt in range(2):
            a(f'ds_read_b128 {vr(vS+4*mt,4)}, v{vT} offset:{64*mt}')
            a(f'ds_read_b128 {vr(vS+8+4*mt,4)}, v{vT} offset:{256+64*mt}')
        a(f's_add_u32 s{sT0}, s{sG2}, s{sTb2}')
        a(f's_lshl_b32 s{sT0}, s{sT0}, 6')
        a(f's_lshl_b32 s{sT1}, s{sRB}, 1')
        a(f's_add_u32 s{sT0}, s{sT0}, s{sT1}')
        a(f's_add_u32 s{sT0}, s{sT0}, s{sWM}')
        a(f's_lshl_b32 s{sT0}, s{sT0}, 10')
        a(f's_add_u32 s{sT0}, s{sT0}, {WS_Z2F}')
        a(f's_add_u32 s{sT1}, s{sT0}, 65536')
        a(f'v_and_b32 v{vT+1}, 1, v{vG}')
        a(f'v_lshlrev_b32 v{vT+1}, 9, v{vT+1}')
        a(f'v_lshrrev_b32 v{vT+2}, 1, v{vG}')
        a(f'v_lshl_add_u32 v{vT+1}, v{vT+2}, 8, v{vT+1}')
        a(f'v_lshl_add_u32 v{vT+1}, v{vI}, 4, v{vT+1}')
        for k in range(8):
            a(f'v_lshlrev_b32 v{vC2+k}, 16, v{vP+k}')
            if n2 == 2: a(f'v_and_b32 v{vC2+8+k}, 0xffff0000, v{vP+k}')
        a('s_waitcnt lgkmcnt(0)')
        for t in range(n2):
            for k in range(8): a(f'v_add_f32 v{vC2+8*t+k}, v{vS+k}, v{vC2+8*t+k}')
            for k in range(8): a(f'v_mul_f32 v{vC2+8*t+k}, v{vS+8+k}, v{vC2+8*t+k}')
            for k in range(4): a(f'v_cvt_pk_bf16_f32 v{vU+4*t+k}, v{vC2+8*t+2*k}, v{vC2+8*t+2*k+1}')
            a(f'v_permlane16_swap_b32 v{vU+4*t}, v{vU+4*t+2}')
            a(f'v_permlane16_swap_b32 v{vU+4*t+1}, v{vU+4*t+3}')
            a(f'buffer_store_dwordx4 {vr(vU+4*t,4)}, v{vT+1}, {sr(sWS,4)}, s{sT0 if t == 0 else sT1} offen')
        pf.stamp()
        pf.dump(10, sWV, vT)
        if PROFILE: a('s_mov_b64 exec, -1')
        if (n2, n1) == (2, 2):
            a(f's_cmp_lg_u32 s{sRB}, 0')
            a('s_cbranch_scc1 K1_END')
            a(f's_cmp_lg_u32 s{sWV}, 0')
            a('s_cbranch_scc1 K1_END')
            a(f's_mul_i32 s{sT0}, s{sCG}, {64 * XNT_PITCH}')
            a(f's_add_u32 s{sT0}, s{sT0}, {WS_XNT + 112}')
            a(f'v_mul_u32_u24 v{vT}, {XNT_PITCH}, v{vL}')
            for r in range(4): a(f'v_mov_b32 v{vS+r}, 0')
            a(f'buffer_store_dwordx4 {vr(vS,4)}, v{vT}, {sr(sWS,4)}, s{sT0} offen')
        a('s_endpgm')

    path(a, vm.copy(), 1, 2, pf.fork())
    a.label('K1_P21'); a.hist = list(hist0)
    path(a, vm.copy(), 2, 1, pf.fork())
    a.label('K1_P22'); a.hist = list(hist0)
    path(a, vm.copy(), 2, 2, pf.fork())
    a.label('K1_END')
    a('s_endpgm')
    return dict(name=name, grid=256, block=512, lds=K1_LDS, vgpr=V.hi, sgpr=100 if PROFILE else 56)
```

```python
from common import *

UCP = 4160
L_FLAG = 0
L_U = 64
L_UCH = 4 * UCP
L_K = L_U + 2 * L_UCH
L_KCH = 4608
L_STG = L_K + 2 * L_KCH
L_STGW = 5120
L_RED = (L_STG + 4 * L_STGW + 255) // 256 * 256
NRING = 6
L_REDW = NRING * 4096
K2_LDS = L_RED + 4 * L_REDW
assert K2_LDS <= 163840
SP = 288

REP = int(os.environ.get('REP', '1'))
ONLY = os.environ.get('ONLY', '')
NOMFMA = int(os.environ.get('NOMFMA', '0'))
NOCONV = int(os.environ.get('NOCONV', '0'))
ROT = int(os.environ.get('ROT', '0'))
PREF = int(os.environ.get('PREF', '0'))
WAHEAD = int(os.environ.get('WAHEAD', '5'))
def gen_k2(a):
    name = 'k2_kernel'
    kernel_header(a, name)
    sWS, sWsp = 12, 16
    sTB, sFB, sWV = 20, 21, 22
    sT0, sT1, sT2, sT3 = 23, 24, 25, 26
    sZo = 28
    sWo = 36
    a('s_cmp_ge_u32 s2, 256')
    a('s_cbranch_scc1 K2_END')
    pf = Prof(a, 1); pf.stamp()
    a(f's_load_dwordx2 s[4:5], s[0:1], {KA["ws"]}')
    a(f's_load_dwordx4 s[8:11], s[0:1], {KA["wsp"]}')
    a(f's_load_dwordx8 s[44:51], s[0:1], {KA["are"]}')
    a(f's_load_dwordx8 s[52:59], s[0:1], {KA["cre"]}')
    vL, vI, vG, vFo, vFp, vTm = 1, 2, 3, 4, 5, 6
    a(f'v_lshrrev_b32 v{vTm}, 6, v0')
    a(f'v_and_b32 v{vL}, 63, v0')
    a(f'v_readfirstlane_b32 s{sWV}, v{vTm}')
    a(f'v_and_b32 v{vI}, 15, v{vL}')
    a(f'v_lshrrev_b32 v{vG}, 4, v{vL}')
    a(f'v_lshlrev_b32 v{vFo}, 2, v{vTm}')
    a(f'v_mov_b32 v{vTm}, 0')
    a(f'ds_write_b32 v{vFo}, v{vTm}')
    a(f's_and_b32 s{sT0}, s2, 7')
    a(f's_lshr_b32 s{sT1}, s2, 3')
    a(f's_lshr_b32 s{sTB}, s{sT0}, 1')
    a(f's_lshl_b32 s{sTB}, s{sTB}, 3')
    a(f's_and_b32 s{sT2}, s{sT1}, 7')
    a(f's_add_u32 s{sTB}, s{sTB}, s{sT2}')
    a(f's_and_b32 s{sFB}, s{sT0}, 1')
    a(f's_lshl_b32 s{sFB}, s{sFB}, 2')
    a(f's_lshr_b32 s{sT2}, s{sT1}, 3')
    a(f's_add_u32 s{sFB}, s{sFB}, s{sT2}')
    a('s_waitcnt lgkmcnt(0)')
    srd(a, sWS, 4, WS_END)
    srd(a, sWsp, 8, 2048 * 4096)
    uid = [0]
    def signal(k):
        a(f'v_mov_b32 v{vTm}, {k}')
        a('s_waitcnt lgkmcnt(0)')
        a(f'ds_write_b32 v{vFo}, v{vTm}')
    def waitflag(x, k):
        uid[0] += 1
        a(f'v_xor_b32 v{vFp}, {4*x}, v{vFo}')
        a(f's_mov_b32 s27, 0')
        a.label(f'K2_W{uid[0]}')
        a(f'ds_read_b32 v{vTm}, v{vFp}')
        a('s_waitcnt lgkmcnt(0)')
        a(f'v_readfirstlane_b32 s{sT3}, v{vTm}')
        a(f's_cmp_ge_u32 s{sT3}, {k}')
        a(f's_cbranch_scc1 K2_G{uid[0]}')
        a('s_sleep 1')
        a(f's_add_u32 s27, s27, 1')
        a(f's_cmp_lt_u32 s27, 0x200000')
        a(f's_cbranch_scc1 K2_W{uid[0]}')
        a.label(f'K2_G{uid[0]}')
    a(f's_cmp_ge_u32 s{sWV}, 4')
    a.fence()
    a('s_cbranch_scc1 K2_CONV')
    hist0 = list(a.hist)
    pf0 = pf.fork()

    V = Alloc(7)
    vZo, vWo, vWr = V(), V(), V()
    vAcc = V(112, 4)
    vF = V(84, 4)
    vWf = V(32, 4)
    def zf(buf, t): return vF + 28 * buf + 4 * t
    def wf(buf, s): return vWf + 16 * buf + 4 * s
    def acc(s, t): return vAcc + 28 * s + 4 * t
    sRing = 40
    pf.stamp()
    a(f's_mul_i32 s{sZo}, s{sFB}, {7 * 65536}')
    a(f's_lshl_b32 s{sT0}, s{sWV}, 14')
    a(f's_add_u32 s{sZo}, s{sZo}, s{sT0}')
    a(f's_add_u32 s{sZo}, s{sZo}, {WS_Z2F}')
    for t in range(1, 7): a(f's_add_u32 s{sZo+t}, s{sZo}, {65536 * t}')
    a(f's_lshl_b32 s{sT0}, s{sTB}, 18')
    a(f's_lshl_b32 s{sT1}, s{sWV}, 10')
    a(f's_add_u32 s{sT0}, s{sT0}, s{sT1}')
    for s in range(4):
        a(f's_xor_b32 s{sT1}, s{sWV}, {s}')
        a(f's_lshl_b32 s{sT1}, s{sT1}, 16')
        a(f's_add_u32 s{sWo+s}, s{sT0}, s{sT1}')
    a(f's_mul_i32 s{sRing}, s{sWV}, {L_REDW}')
    a(f's_add_u32 s{sRing}, s{sRing}, {L_RED}')
    a(f'v_lshlrev_b32 v{vZo}, 4, v{vL}')
    vWo1, vWr1 = V(), V()
    t0, t1, t2 = vF, vF + 1, vF + 2
    a(f'v_and_b32 v{t0}, 7, v{vL}')
    a(f'v_lshrrev_b32 v{t1}, 3, v{vL}')
    a(f'v_xor_b32 v{t2}, v{t0}, v{vG}')
    a(f'v_lshlrev_b32 v{vWo}, 12, v{t1}')
    a(f'v_lshl_add_u32 v{vWo}, v{t2}, 4, v{vWo}')
    a(f'v_xor_b32 v{vWo1}, 64, v{vWo}')
    a(f'v_add_u32 v{vWo1}, 0x8000, v{vWo1}')
    a(f'v_lshrrev_b32 v{t0}, 1, v{vI}')
    a(f'v_xor_b32 v{t0}, v{t0}, v{vG}')
    a(f'v_lshlrev_b32 v{vWr}, 7, v{vI}')
    a(f'v_lshl_add_u32 v{vWr}, v{t0}, 4, v{vWr}')
    a(f'v_add_u32 v{vWr}, s{sRing}, v{vWr}')
    a(f'v_xor_b32 v{vWr1}, 64, v{vWr}')
    vm = VM()
    sRot = 41
    vZk = V()
    a(f's_and_b32 s{sRot}, s{sTB}, 7')
    a(f's_lshl_b32 s{sRot}, s{sRot}, 1')
    if not ROT: a(f's_mov_b32 s{sRot}, 0')
    def ldw(p, q):
        a(f's_add_u32 s{sT0}, s{sRot}, {2*p}')
        a(f's_and_b32 s{sT0}, s{sT0}, 15')
        a(f's_lshl_b32 s{sT0}, s{sT0}, 6')
        a(f's_add_u32 s{sT0}, s{sT0}, s{sWo+q//2}')
        a(f's_add_u32 m0, s{sRing}, {(p % 3) * 8192 + q * 1024}')
        a(f'buffer_load_dwordx4 v{vWo1 if q & 1 else vWo}, {sr(sWsp,4)}, s{sT0} offen lds'); vm.add(('W', p))
    def ldz(ks, t):
        if t == 0:
            a(f's_add_u32 s{sT0}, s{sRot}, {ks}')
            a(f's_and_b32 s{sT0}, s{sT0}, 15')
            a(f's_lshl_b32 s{sT0}, s{sT0}, 10')
            a(f'v_add_u32 v{vZk}, s{sT0}, v{vZo}')
        a(f'buffer_load_dwordx4 {vr(zf(ks%3,t),4)}, v{vZk}, {sr(sWS,4)}, s{sZo+t} offen'); vm.add(('Z', ks, t))
    def rdw(ks):
        for s in range(4):
            a(f'ds_read_b128 {vr(wf(ks&1,s),4)}, v{vWr1 if ks & 1 else vWr} offset:{((ks//2) % 3) * 8192 + s * 2048}')
    a('s_barrier')
    for rep in range(REP):
        for q in range(8): ldw(0, q)
        for t in range(7): ldz(0, t)
        for t in range(7): ldz(1, t)
        for q in range(8): ldw(1, q)
        for t in range(7): ldz(2, t)
        for q in range(4): ldw(2, q)
        vm.wait(a, ('W', 0))
        rdw(0)
        for ks in range(16):
            if ks == 1 or ks == 8: pf.stamp()
            if ks + 1 < 16 and ('W', (ks + 1) // 2) in vm.ops: vm.wait(a, ('W', (ks + 1) // 2))
            a('s_waitcnt lgkmcnt(0)')
            if ks + 1 < 16: rdw(ks + 1)
            wp = (ks + 5) // 2
            wq = list(range(0, 4)) if ks & 1 else list(range(4, 8))
            for t in range(7):
                if ('Z', ks, t) in vm.ops: vm.wait(a, ('Z', ks, t))
                for s in range(4):
                    c = '0' if ks == 0 else vr(acc(s, t), 4)
                    if not NOMFMA or ks == 0: a(f'v_mfma_f32_16x16x32_bf16 {vr(acc(s,t),4)}, {vr(zf(ks%3,t),4)}, {vr(wf(ks&1,s),4)}, {c}')
                if ks + 3 < 16: ldz(ks + 3, t)
                if wp < 8 and t in (0, 2, 4, 6): ldw(wp, wq[t // 2])
        pf.stamp()
    vZ1 = vF
    vBs = vF + 16
    vAd = vF + 17
    vRa = vF + 18
    vRd = vF + 20
    a(f's_lshl_b32 s{sT0}, s{sTB}, 6')
    a(f's_lshl_b32 s{sT1}, s{sWV}, 4')
    a(f's_add_u32 s{sT0}, s{sT0}, s{sT1}')
    a(f'v_add_u32 v{vBs}, s{sT0}, v{vI}')
    a(f'v_lshlrev_b32 v{vBs}, 1, v{vBs}')
    a(f'global_load_ushort v{vBs}, v{vBs}, s[10:11]')
    a(f's_lshl_b32 s{sT0}, s{sTB}, 2')
    a(f's_add_u32 s{sT0}, s{sT0}, s{sWV}')
    a(f's_mul_i32 s{sT1}, s{sT0}, 56')
    a(f's_mul_i32 s{sT2}, s{sFB}, 7')
    a(f's_add_u32 s{sT1}, s{sT1}, s{sT2}')
    a(f's_lshl_b32 s{sT1}, s{sT1}, 9')
    a(f's_add_u32 s{sT2}, s{sT1}, {WS_H}')
    a(f's_add_u32 s{sT1}, s{sT1}, {WS_Z1}')
    a(f'v_lshlrev_b32 v{vAd}, 3, v{vL}')
    for t in range(7):
        a(f'buffer_load_dwordx2 {vr(vZ1+2*t,2)}, v{vAd}, {sr(sWS,4)}, s{sT1} offen offset:{512*t}')
    a(f'v_lshrrev_b32 v{vAd}, 1, v{vG}')
    a(f'v_lshl_add_u32 v{vAd}, v{vAd}, 4, v{vI}')
    a(f'v_lshlrev_b32 v{vAd}, 4, v{vAd}')
    a(f'v_and_b32 v{vRa}, 1, v{vG}')
    a(f'v_lshl_add_u32 v{vAd}, v{vRa}, 3, v{vAd}')
    a(f's_mul_i32 s{sT0}, s{sWV}, {L_REDW}')
    a(f's_add_u32 s{sT0}, s{sT0}, {L_RED}')
    a(f'v_lshl_add_u32 v{vRa}, v{vL}, 4, s{sT0}')
    a(f's_xor_b32 s{sT0}, s{sWV}, 1')
    a(f's_mul_i32 s{sT0}, s{sT0}, {L_REDW}')
    a(f's_add_u32 s{sT0}, s{sT0}, {L_RED}')
    a(f'v_lshl_add_u32 v{vRa+1}, v{vL}, 4, s{sT0}')
    for k, s in enumerate((1, 3)):
        for t in range(7):
            a(f'ds_write_b128 v{vRa}, {vr(acc(s,t),4)} offset:{1024*(7*k+t)}')
    signal(1)
    waitflag(1, 1)
    for k in range(14): a(f'ds_read_b128 {vr(vRd+4*k,4)}, v{vRa+1} offset:{1024*k}')
    for k, s in ((1, 2), (0, 0)):
        pass
    for k in range(14):
        a(f's_waitcnt lgkmcnt({13-k})')
        s = 0 if k < 7 else 2
        for r in range(4): a(f'v_add_f32 v{acc(s,k%7)+r}, v{acc(s,k%7)+r}, v{vRd+4*k+r}')
    for t in range(7):
        a(f'ds_write_b128 v{vRa+1}, {vr(acc(2,t),4)} offset:{1024*t}')
    signal(2)
    waitflag(2, 2)
    a(f's_xor_b32 s{sT0}, s{sWV}, 3')
    a(f's_mul_i32 s{sT0}, s{sT0}, {L_REDW}')
    a(f's_add_u32 s{sT0}, s{sT0}, {L_RED}')
    a(f'v_lshl_add_u32 v{vRa}, v{vL}, 4, s{sT0}')
    for k in range(7): a(f'ds_read_b128 {vr(vRd+4*k,4)}, v{vRa} offset:{1024*k}')
    a('s_waitcnt vmcnt(0)')
    a(f'v_lshlrev_b32 v{vBs}, 16, v{vBs}')
    U = vAcc + 28
    for t in range(7):
        a(f's_waitcnt lgkmcnt({6-t})')
        c = acc(0, t)
        for r in range(4): a(f'v_add_f32 v{c+r}, v{c+r}, v{vRd+4*t+r}')
        for r in range(4): a(f'v_add_f32 v{c+r}, v{vBs}, v{c+r}')
        for q in range(2):
            a(f'v_lshlrev_b32 v{U+2+2*q}, 16, v{vZ1+2*t+q}')
            a(f'v_and_b32 v{U+3+2*q}, 0xffff0000, v{vZ1+2*t+q}')
        for r in range(4): a(f'v_mul_f32 v{c+r}, v{c+r}, v{U+2+r}')
        a(f'v_cvt_pk_bf16_f32 v{vZ1+2*t}, v{c}, v{c+1}')
        a(f'v_cvt_pk_bf16_f32 v{vZ1+2*t+1}, v{c+2}, v{c+3}')
        a(f'buffer_store_dwordx2 {vr(vZ1+2*t,2)}, v{vAd}, {sr(sWS,4)}, s{sT2} offen offset:{512*t}')
    pf.stamp()
    pf.dump(4, sWV, vF)
    a('s_endpgm')
    gemm_hi = V.hi
    pf = pf0

    a.label('K2_CONV'); a.hist = hist0
    sCH, sHF, sD, sUb, sKb, sSt, sDk = 28, 29, 30, 31, 32, 33, 34
    V = Alloc(7)
    vP = V(6)
    vSw, vSr = V(), V()
    vA2, vBr = V(), V()
    vL1, vL8, vP1 = V(2), V(2), V(2)
    vE = V(16, 4)
    vY = V(2)
    vt = V(8, 4)
    vYf = V(32, 4)
    vXf = V(16, 4)
    vD = V(20, 4)
    vQ = V(12, 4)
    a(f's_lshr_b32 s{sCH}, s{sWV}, 1')
    a(f's_and_b32 s{sCH}, s{sCH}, 1')
    a(f's_and_b32 s{sHF}, s{sWV}, 1')
    a(f's_lshl_b32 s{sD}, s2, 1')
    a(f's_add_u32 s{sD}, s{sD}, s{sCH}')
    a(f's_lshl_b32 s{sT0}, s{sD}, 8')
    a(f's_lshl_b32 s{sT1}, s{sHF}, 7')
    a(f's_add_u32 s{sT0}, s{sT0}, s{sT1}')
    a(f'v_lshl_add_u32 v{vTm}, v{vL}, 1, s{sT0}')
    for k in range(6):
        a(f'global_load_ushort v{vP+k}, v{vTm}, s[{44+2*k}:{45+2*k}]')
    a(f's_lshl_b32 s{sT0}, s2, 2')
    a(f's_load_dword s{sT1}, s[56:57], s{sT0}')
    a(f's_load_dword s{sDk}, s[58:59], s{sT0}')
    a(f's_mul_i32 s{sUb}, s{sCH}, {L_UCH}')
    a(f's_add_u32 s{sUb}, s{sUb}, {L_U}')
    a(f's_mul_i32 s{sKb}, s{sCH}, {L_KCH}')
    a(f's_add_u32 s{sKb}, s{sKb}, {L_K}')
    a(f's_sub_u32 s{sSt}, s{sWV}, 4')
    a(f's_mul_i32 s{sSt}, s{sSt}, {L_STGW}')
    a(f's_add_u32 s{sSt}, s{sSt}, {L_STG}')
    a(f's_mul_i32 s{sT2}, s{sD}, {XNT_PITCH}')
    a(f's_lshl_b32 s{sT0}, s{sHF}, 2')
    a(f's_add_u32 s{sT2}, s{sT2}, s{sT0}')
    a(f's_add_u32 s{sT2}, s{sT2}, {WS_XNT + 128 + 16 - 22}')
    a(f's_mul_i32 s{sT0}, s{sHF}, {2 * UCP}')
    a(f's_add_u32 s{sT0}, s{sT0}, s{sUb}')
    a(f'v_lshlrev_b32 v{vSw}, 4, v{vL}')
    for rho in range(2):
        for q in range(4):
            a(f's_add_u32 s{sT3}, s{sT2}, {2*rho + 1024*q}')
            a(f's_add_u32 m0, s{sT0}, {rho * UCP + 32 + 1024 * q}')
            a(f'buffer_load_dwordx4 v{vSw}, {sr(sWS,4)}, s{sT3} offen lds')
    for r in range(4): a(f'v_mov_b32 v{vt+r}, 0')
    a(f'v_lshrrev_b32 v{vTm}, 1, v{vL}')
    a(f'v_mul_u32_u24 v{vTm}, {UCP}, v{vTm}')
    a(f'v_and_b32 v{vSr}, 1, v{vL}')
    a(f'v_lshl_add_u32 v{vTm}, v{vSr}, 4, v{vTm}')
    a(f'v_add_u32 v{vTm}, s{sT0}, v{vTm}')
    a('s_mov_b64 exec, 15')
    a(f'ds_write_b128 v{vTm}, {vr(vt,4)}')
    a('s_mov_b32 exec_lo, -1')
    a(f'v_add_u32 v{vTm}, s{sKb}, v{vSw}')
    a(f'ds_write_b128 v{vTm}, {vr(vt,4)} offset:4096')
    a('s_mov_b64 exec, -1')
    a('s_barrier')
    if NOCONV: a('s_endpgm')
    if PREF == 1:
        vPw, vPz, vPd = vE, vE + 1, vE + 2
        a(f's_lshl_b32 s{sT0}, s{sTB}, 2')
        a(f's_and_b32 s{sT3}, s{sFB}, 3')
        a(f's_add_u32 s{sT0}, s{sT0}, s{sT3}')
        a(f's_lshl_b32 s{sT0}, s{sT0}, 16')
        a(f's_and_b32 s{sT3}, s{sWV}, 3')
        a(f's_lshl_b32 s{sT2}, s{sT3}, 7')
        a(f's_add_u32 s{sT0}, s{sT0}, s{sT2}')
        a(f'v_lshlrev_b32 v{vPw}, 12, v{vI}')
        a(f'v_lshl_add_u32 v{vPw}, v{vG}, 10, v{vPw}')
        a(f'v_lshrrev_b32 v{vPz}, 3, v{vL}')
        a(f'v_min_u32 v{vPz}, 6, v{vPz}')
        a(f'v_lshlrev_b32 v{vPz}, 16, v{vPz}')
        a(f'v_bfe_u32 v{vPd}, v{vL}, 1, 2')
        a(f'v_lshl_add_u32 v{vPz}, v{vPd}, 14, v{vPz}')
        a(f'v_and_b32 v{vPd}, 1, v{vL}')
        a(f'v_lshl_add_u32 v{vPz}, v{vPd}, 10, v{vPz}')
        a(f's_mul_i32 s{sT2}, s{sFB}, {7 * 65536}')
        a(f's_lshl_b32 s{sT3}, s{sT3}, 11')
        a(f's_add_u32 s{sT2}, s{sT2}, s{sT3}')
        a(f's_and_b32 s{sT3}, s{sTB}, 7')
        a(f's_lshl_b32 s{sT3}, s{sT3}, 7')
        a(f's_add_u32 s{sT2}, s{sT2}, s{sT3}')
        a(f's_add_u32 s{sT2}, s{sT2}, {WS_Z2F}')
        a(f's_add_u32 s{sT3}, s{sT2}, 8192')
        a(f'buffer_load_dword v230, v{vPw}, {sr(sWsp,4)}, s{sT0} offen')
        a(f'buffer_load_dword v231, v{vPz}, {sr(sWS,4)}, s{sT2} offen')
        a(f'buffer_load_dword v232, v{vPw}, {sr(sWsp,4)}, s{sT0} offen offset:512')
        a(f'buffer_load_dword v233, v{vPz}, {sr(sWS,4)}, s{sT3} offen')
    a(f'v_lshl_add_u32 v{vSw}, v{vL}, 2, s{sSt}')
    a(f'v_mul_u32_u24 v{vSr}, {SP}, v{vI}')
    a(f'v_lshl_add_u32 v{vSr}, v{vG}, 4, v{vSr}')
    a(f'v_add_u32 v{vSr}, s{sSt}, v{vSr}')
    a('s_waitcnt lgkmcnt(0)')
    a(f's_lshl_b32 s{sT0}, s{sCH}, 4')
    a(f's_lshr_b32 s{sT1}, s{sT1}, s{sT0}')
    a(f's_lshl_b32 s{sT1}, s{sT1}, 16')
    a(f's_lshr_b32 s{sDk}, s{sDk}, s{sT0}')
    a(f's_lshl_b32 s{sDk}, s{sDk}, 16')
    LOG2E = math.log2(math.e)
    hi = struct.unpack('<f', struct.pack('<f', LOG2E))[0]; lo = LOG2E - hi
    a(f'v_mov_b32 v{vt}, s{sT1}')
    a(f'v_mul_f32 v{vt+1}, {fl(hi)}, v{vt}')
    a(f'v_mov_b32 v{vt+3}, {fl(hi)}')
    a(f'v_fma_f32 v{vt+2}, v{vt}, v{vt+3}, -v{vt+1}')
    a(f'v_fmamk_f32 v{vt+2}, v{vt}, {fl(lo)}, v{vt+2}')
    a(f'v_exp_f32 v{vt+1}, v{vt+1}')
    a(f'v_mul_f32 v{vt+2}, {fl(math.log(2.0))}, v{vt+2}')
    a(f'v_fma_f32 v{vt+1}, v{vt+1}, v{vt+2}, v{vt+1}')
    a(f'v_cvt_pk_bf16_f32 v{vt+1}, v{vt+1}, v{vt+1}')
    a(f'v_and_b32 v{vt+1}, 0xffff0000, v{vt+1}')
    pf.stamp()
    a(f's_waitcnt vmcnt({12 if PREF == 1 else 8})')
    pf.stamp()
    for k in range(6): a(f'v_lshlrev_b32 v{vP+k}, 16, v{vP+k}')
    for k in range(4): a(f'v_mul_f32 v{vP+k}, v{vt+1}, v{vP+k}')
    a(f'v_mul_f32 v{vA2}, {fl(LOG2E)}, v{vP}')
    a(f'v_mul_f32 v{vBr}, 0.15915494, v{vP+1}')
    a(f'v_mul_f32 v{vt}, v{vP+5}, v{vP+3}')
    a(f'v_mul_f32 v{vt+1}, v{vP+5}, v{vP+2}')
    a(f'v_fma_f32 v{vE}, v{vP+4}, v{vP+2}, -v{vt}')
    a(f'v_fma_f32 v{vE+1}, v{vP+4}, v{vP+3}, v{vt+1}')
    for k, (dst, l) in enumerate(((vL8, 8.0), (vL1, 1.0), (vP1, 128.0))):
        a(f'v_mul_f32 v{vt+2*k}, {fl(l)}, v{vA2}')
        a(f'v_mul_f32 v{vt+2*k+1}, {fl(l)}, v{vBr}')
    for k in range(3):
        a(f'v_exp_f32 v{vt+2*k}, v{vt+2*k}')
        a(f'v_fract_f32 v{vt+2*k+1}, v{vt+2*k+1}')
    for k, dst in enumerate((vL8, vL1, vP1)):
        a(f'v_cos_f32 v{dst}, v{vt+2*k+1}')
        a(f'v_sin_f32 v{dst+1}, v{vt+2*k+1}')
    for k, dst in enumerate((vL8, vL1, vP1)):
        a(f'v_mul_f32 v{dst}, v{dst}, v{vt+2*k}')
        a(f'v_mul_f32 v{dst+1}, v{dst+1}, v{vt+2*k}')
    tsel = [0]
    def cmul(d, x, y):
        t = vt + 2 * (tsel[0] & 3); tsel[0] += 1
        a(f'v_pk_mul_f32 {vr(t,2)}, {vr(x,2)}, {vr(y,2)} op_sel:[1,1] op_sel_hi:[1,0]')
        a(f'v_pk_fma_f32 {vr(d,2)}, {vr(x,2)}, {vr(y,2)}, {vr(t,2)} op_sel:[0,0,0] op_sel_hi:[0,1,1] neg_lo:[0,0,1]')
    qsel = [0]
    def put(row, x, neg):
        q = vQ + (qsel[0] % 12); qsel[0] += 1
        a(f'v_cvt_pk_bf16_f32 v{q}, v{x}, {"-" if neg else ""}v{x+1}')
        a(f'ds_write_b32 v{vSw}, v{q} offset:{row * SP}')
    a(f'v_mov_b32 v{vQ+11}, 0x3f80')
    a(f'ds_write_b32 v{vSw}, v{vQ+11}')
    put(1, vL8, False)
    put(16, vP1, False)
    for j in range(2, 16):
        cmul(vY, vL8 if j == 2 else vY, vL8)
        if j - 1 <= 7: cmul(vE + 2*(j-1), vE + 2*(j-2), vL1)
        put(j, vY, False)
    for k in range(4):
        a(f'ds_read_b128 {vr(vYf+4*k,4)}, v{vSr} offset:{64*k}')
        a(f'ds_read_b128 {vr(vYf+16+4*k,4)}, v{vSr} offset:{64*k + SP}')
    def xround(tile, both):
        for k in range(4): a(f'ds_read_b128 {vr(vXf+4*k,4)}, v{vSr} offset:{64*k}')
    def xmfma(dsts):
        for k in range(4):
            for di, d in enumerate(dsts):
                c = '0' if k == 0 else vr(d, 4)
                a(f'v_mfma_f32_16x16x32_bf16 {vr(d,4)}, {vr(vXf+4*k,4)}, {vr(vYf+16*di+4*k,4)}, {c}')
    for e in range(8): put(e, vE + 2*e, True)
    for e in range(8):
        cmul(vE + 2*e, vE + 2*e, vP1); put(8 + e, vE + 2*e, True)
    xround(0, False)
    for i in (2, 3):
        for k, e in enumerate((0, 2, 4, 6)):
            cmul(vE + 2*e, vE + 2*e, vP1); put(4*(i-2) + k, vE + 2*e, True)
    a('s_waitcnt lgkmcnt(8)')
    xmfma([vD])
    for i in (4, 5, 6, 7):
        for k, e in enumerate((0, 4)):
            cmul(vE + 2*e, vE + 2*e, vP1); put(8 + 2*(i-4) + k, vE + 2*e, True)
    xround(1, True)
    for i in range(8, 16):
        cmul(vE, vE, vP1); put(4*((i-8)//2) + ((i-8) & 1), vE, True)
    a('s_waitcnt lgkmcnt(8)')
    xmfma([vD + 4, vD + 8])
    xround(2, True)
    a('s_waitcnt lgkmcnt(0)')
    xmfma([vD + 12, vD + 16])
    pf.stamp()
    a(f'v_lshl_add_u32 v{vSw}, v{vL}, 4, s{sSt}')
    a(f's_xor_b32 s{sT0}, s{sWV}, 1')
    a(f's_sub_u32 s{sT0}, s{sT0}, 4')
    a(f's_mul_i32 s{sT0}, s{sT0}, {L_STGW}')
    a(f's_add_u32 s{sT0}, s{sT0}, {L_STG}')
    a(f'v_lshl_add_u32 v{vSr}, v{vL}, 4, s{sT0}')
    for k in range(5): a(f'ds_write_b128 v{vSw}, {vr(vD+4*k,4)} offset:{1024*k}')
    signal(1)
    waitflag(1, 1)
    for k in range(5): a(f'ds_read_b128 {vr(vYf+4*k,4)}, v{vSr} offset:{1024*k}')
    vKa = vA2
    a(f'v_lshlrev_b32 v{vKa}, 4, v{vI}')
    a(f'v_sub_u32 v{vKa}, s{sKb}, v{vKa}')
    a('s_waitcnt lgkmcnt(0)')
    for k in range(20): a(f'v_add_f32 v{vD+k}, v{vD+k}, v{vYf+k}')
    a(f's_cmp_eq_u32 s{sHF}, 0')
    a.fence()
    a('s_cbranch_scc0 K2_EXP1')
    h1 = list(a.hist)
    a(f'v_lshrrev_b32 v{vt}, 1, v{vG}')
    a(f'v_lshlrev_b32 v{vt}, 8, v{vt}')
    a(f'v_and_b32 v{vt+1}, 1, v{vG}')
    a(f'v_lshl_add_u32 v{vt}, v{vt+1}, 3, v{vt}')
    a(f'v_sub_u32 v{vt}, v{vKa}, v{vt}')
    a(f'v_cvt_pk_bf16_f32 v{vQ}, v{vD+3}, v{vD+2}')
    a(f'v_cvt_pk_bf16_f32 v{vQ+1}, v{vD+1}, v{vD}')
    a(f'ds_write_b64 v{vt}, {vr(vQ,2)} offset:4088')
    T, Tp = vD + 4, vD + 8
    a(f'v_lshlrev_b32 v{vt+2}, 8, v{vG}')
    a(f'v_sub_u32 v{vt+2}, v{vKa}, v{vt+2}')
    a(f'v_cvt_pk_bf16_f32 v{vQ+4}, v{Tp}, v{T+3}')
    a(f'v_cvt_pk_bf16_f32 v{vQ+5}, v{T+2}, v{T+2}')
    a(f'v_cvt_pk_bf16_f32 v{vQ+6}, v{T+2}, v{T+1}')
    a(f'v_cvt_pk_bf16_f32 v{vQ+7}, v{T}, v{T}')
    a('s_mov_b32 exec_hi, 0')
    a(f'ds_write_b128 v{vt+2}, {vr(vQ+4,4)} offset:{4080-512}')
    a('s_mov_b32 exec_hi, -1')
    a(f'v_lshlrev_b32 v{vt+3}, 9, v{vG}')
    a(f'v_sub_u32 v{vt+3}, v{vKa}, v{vt+3}')
    for k in range(2):
        q = vXf + 4*k
        a(f'v_cvt_pk_bf16_f32 v{q}, v{Tp+2*k}, v{Tp+2*k}')
        a(f'v_cvt_pk_bf16_f32 v{q+1}, v{T+2*k+1}, v{T+2*k+1}')
        a(f'v_cvt_pk_bf16_f32 v{q+2}, v{T+2*k+1}, v{T+2*k}')
        a(f'v_cvt_pk_bf16_f32 v{q+3}, v{T+2*k}, v{T+2*k}')
    a('s_mov_b32 exec_lo, 0')
    for k in range(2): a(f'ds_write_b128 v{vt+3}, {vr(vXf+4*k,4)} offset:{4080-256*k}')
    a('s_mov_b32 exec_lo, -1')
    a('s_branch K2_EXPD')
    a.label('K2_EXP1'); a.hist = h1
    T, Tp = vD + 12, vD + 16
    a(f'v_lshlrev_b32 v{vt+3}, 9, v{vG}')
    a(f'v_sub_u32 v{vt+3}, v{vKa}, v{vt+3}')
    a(f'v_and_b32 v{vt}, 1, v{vI}')
    a(f'v_cmp_eq_u32 vcc, 1, v{vt}')
    for k in range(2):
        q = vXf + 4*k
        a(f'v_cndmask_b32 v{vt+1}, v{T+k}, v{Tp+k}, vcc')
        a(f'v_cvt_pk_bf16_f32 v{q}, v{Tp+k}, v{Tp+k}')
        a(f'v_cvt_pk_bf16_f32 v{q+1}, v{Tp+k}, v{vt+1}')
        a(f'v_cvt_pk_bf16_f32 v{q+2}, v{T+k}, v{T+k}')
        a(f'v_cvt_pk_bf16_f32 v{q+3}, v{T+k}, v{T+k}')
        a(f'ds_write_b128 v{vt+3}, {vr(q,4)} offset:{4080-2048-256*k}')
    a.fence()
    a.label('K2_EXPD')
    a('s_waitcnt vmcnt(0)')
    signal(2)
    waitflag(1, 2)
    pf.stamp()
    V2 = Alloc(7 + 4)
    vUa, vKr = 7, 8
    vSw2, vSr2 = 9, 10
    a(f'v_mov_b32 v{vSw2}, v{vSw}')
    a(f'v_mov_b32 v{vSr2}, v{vSr}')
    vAc = V2(32, 4)
    vAf = V2(64, 4)
    vBf = V2(64, 4)
    vt2 = V2(8, 4)
    a(f'v_and_b32 v{vt2}, 3, v{vI}')
    a(f'v_mul_u32_u24 v{vt2}, {UCP}, v{vt2}')
    a(f'v_and_b32 v{vt2+1}, 12, v{vI}')
    a(f'v_lshl_add_u32 v{vt2}, v{vt2+1}, 1, v{vt2}')
    a(f'v_lshl_add_u32 v{vt2}, v{vG}, 4, v{vt2}')
    a(f'v_add_u32 v{vt2}, 8, v{vt2}')
    a(f's_lshl_b32 s{sT0}, s{sHF}, 8')
    a(f's_add_u32 s{sT1}, s{sT0}, s{sUb}')
    a(f'v_add_u32 v{vUa}, s{sT1}, v{vt2}')
    a(f'v_lshlrev_b32 v{vt2}, 1, v{vI}')
    a(f'v_sub_u32 v{vt2}, v{vG}, v{vt2}')
    a(f'v_lshlrev_b32 v{vt2}, 4, v{vt2}')
    a(f's_add_u32 s{sT1}, s{sT0}, s{sKb}')
    a(f's_add_u32 s{sT1}, s{sT1}, {16*254 - 3584}')
    a(f'v_add_u32 v{vKr}, s{sT1}, v{vt2}')
    def ld(rp, k):
        buf = rp & 1
        a(f'ds_read_b64 {vr(vAf+32*buf+4*k,2)}, v{vUa} offset:{64*(8*k+rp)}')
        a(f'ds_read_b64 {vr(vAf+32*buf+4*k+2,2)}, v{vUa} offset:{64*(8*k+rp)+8}')
        a(f'ds_read_b128 {vr(vBf+32*buf+4*k,4)}, v{vKr} offset:{64*rp + 512*(7-k)}')
    for k in range(8): ld(0, k)
    for rp in range(4):
        buf = rp & 1
        outstanding = 16
        issued_next = 0
        for mx in range(8):
            rem = (7 - mx) * 3 + issued_next * 3
            a(f's_waitcnt lgkmcnt({min(rem, 15)})')
            pairs = [(x, y) for x in range(8) for y in range(8) if max(x, y) == mx and x + y <= 7]
            for (x, y) in pairs:
                q = x + y
                first = (rp == 0) and (q not in getattr(ld, 'seen', set()))
                if not hasattr(ld, 'seen'): ld.seen = set()
                c = '0' if first else vr(vAc+4*q, 4)
                ld.seen.add(q)
                a(f'v_mfma_f32_16x16x32_bf16 {vr(vAc+4*q,4)}, {vr(vAf+32*buf+4*x,4)}, {vr(vBf+32*buf+4*y,4)}, {c}')
            if rp < 3:
                ld(rp + 1, mx); issued_next += 1
    pf.stamp()
    a(f's_cmp_eq_u32 s{sHF}, 0')
    a.fence()
    a('s_cbranch_scc0 K2_FX1')
    for k in range(4): a(f'ds_write_b128 v{vSw2}, {vr(vAc+16+4*k,4)} offset:{1024*k}')
    a('s_branch K2_FXD')
    a.label('K2_FX1')
    for k in range(4): a(f'ds_write_b128 v{vSw2}, {vr(vAc+4*k,4)} offset:{1024*k}')
    a('s_waitcnt lgkmcnt(0)')
    for k in range(16): a(f'v_mov_b32 v{vAc+k}, v{vAc+16+k}')
    a.label('K2_FXD')
    signal(3)
    waitflag(1, 3)
    for k in range(4): a(f'ds_read_b128 {vr(vAf+4*k,4)}, v{vSr2} offset:{1024*k}')
    a(f'v_lshlrev_b32 v{vt2}, 5, v{vI}')
    a(f'v_lshl_add_u32 v{vt2}, v{vG}, 3, v{vt2}')
    a(f's_lshl_b32 s{sT0}, s{sHF}, 11')
    a(f's_add_u32 s{sT1}, s{sT0}, s{sUb}')
    a(f's_add_u32 s{sT1}, s{sT1}, {3*UCP + 32}')
    a(f'v_add_u32 v{vt2+1}, s{sT1}, v{vt2}')
    for k in range(4): a(f'ds_read_b64 {vr(vBf+2*k,2)}, v{vt2+1} offset:{512*k}')
    a(f's_lshl_b32 s{sT1}, s{sD}, 12')
    a(f's_add_u32 s{sT1}, s{sT1}, s{sT0}')
    a(f's_add_u32 s{sT1}, s{sT1}, {WS_YT}')
    a('s_waitcnt lgkmcnt(0)')
    W = vBf + 16
    for k in range(4):
        c = vAc + 4*k
        for r in range(4): a(f'v_add_f32 v{c+r}, v{c+r}, v{vAf+4*k+r}')
        for q in range(2):
            a(f'v_lshlrev_b32 v{W+2*q}, 16, v{vBf+2*k+q}')
            a(f'v_and_b32 v{W+2*q+1}, 0xffff0000, v{vBf+2*k+q}')
        for r in range(4): a(f'v_fma_f32 v{c+r}, s{sDk}, v{W+r}, v{c+r}')
        a(f'v_cvt_pk_bf16_f32 v{W+8+2*k}, v{c}, v{c+1}')
        a(f'v_cvt_pk_bf16_f32 v{W+9+2*k}, v{c+2}, v{c+3}')
        a(f'buffer_store_dwordx2 {vr(W+8+2*k,2)}, v{vt2}, {sr(sWS,4)}, s{sT1} offen offset:{512*k}')
    pf.stamp()
    pf.dump(4, sWV, vt2 + 2)
    a.label('K2_END')
    a('s_endpgm')
    return dict(name=name, grid=256, block=512, lds=K2_LDS, vgpr=max(gemm_hi, V.hi, V2.hi), sgpr=100 if PROFILE else 64)
```

```python
from common import *

L_B = 0
L_Y = 28 * 4096
L_R = L_Y + 8192
RP = 272
K3_LDS = L_R + 2 * 64 * RP

def gen_k3(a):
    name = 'k3_kernel'
    kernel_header(a, name)
    sX, sW, sWS, sO = 12, 16, 20, 24
    sRB, sDB, sWV, sWM, sKH = 28, 29, 30, 31, 32
    sT0, sT1, sT2, sAoff, sBoff, sMw, sXo = 33, 34, 35, 36, 37, 38, 40
    a('s_cmp_ge_u32 s2, 256')
    a('s_cbranch_scc1 K3_END')
    pf = Prof(a, 2); pf.stamp()
    a(f's_load_dwordx2 s[4:5], s[0:1], {KA["x"]}')
    a(f's_load_dwordx4 s[8:11], s[0:1], {KA["wout"]}')
    a(f's_load_dwordx2 s[6:7], s[0:1], {KA["ws"]}')
    V = Alloc(1)
    vL, vI, vG = V(), V(), V()
    vAoff, vBoff, vXoff = V(), V(), V()
    vT = V(8, 4)
    vTr = V(4)
    vA = V(56, 4)
    vB = V(32, 4)
    vC = V(16, 4)
    vY = V(8, 4)
    vX = V(4, 4)
    vR = V(16, 4)
    a(f'v_lshrrev_b32 v{vT}, 6, v0')
    a(f'v_and_b32 v{vL}, 63, v0')
    a(f'v_readfirstlane_b32 s{sWV}, v{vT}')
    a(f'v_and_b32 v{vI}, 15, v{vL}')
    a(f'v_lshrrev_b32 v{vG}, 4, v{vL}')
    a(f's_and_b32 s{sT0}, s2, 7')
    a(f's_lshr_b32 s{sT1}, s2, 3')
    a(f's_lshr_b32 s{sRB}, s{sT0}, 1')
    a(f's_lshl_b32 s{sRB}, s{sRB}, 3')
    a(f's_and_b32 s{sT2}, s{sT1}, 7')
    a(f's_add_u32 s{sRB}, s{sRB}, s{sT2}')
    a(f's_and_b32 s{sDB}, s{sT0}, 1')
    a(f's_lshl_b32 s{sDB}, s{sDB}, 2')
    a(f's_lshr_b32 s{sT2}, s{sT1}, 3')
    a(f's_add_u32 s{sDB}, s{sDB}, s{sT2}')
    a(f's_and_b32 s{sWM}, s{sWV}, 3')
    a(f's_lshr_b32 s{sKH}, s{sWV}, 2')
    a(f's_lshl_b32 s{sT0}, s{sRB}, 2')
    a(f's_add_u32 s{sT0}, s{sT0}, s{sWM}')
    a(f's_mul_i32 s{sT0}, s{sT0}, 28')
    a(f's_add_u32 s{sT0}, s{sT0}, s{sKH}')
    a(f's_lshl_b32 s{sAoff}, s{sT0}, 10')
    a(f's_add_u32 s{sAoff}, s{sAoff}, {WS_H}')
    a(f's_lshl_b32 s{sBoff}, s{sKH}, 15')
    a(f's_lshl_b32 s{sT0}, s{sDB}, 7')
    a(f's_add_u32 s{sBoff}, s{sBoff}, s{sT0}')
    a(f's_lshl_b32 s{sMw}, s{sWV}, 10')
    a(f'v_lshlrev_b32 v{vAoff}, 4, v{vL}')
    a(f'v_lshrrev_b32 v{vT}, 3, v{vL}')
    a(f'v_and_b32 v{vT+1}, 3, v{vT}')
    a(f'v_and_b32 v{vT+2}, 4, v{vT}')
    a(f'v_lshl_add_u32 v{vT+1}, v{vT+2}, 1, v{vT+1}')
    a(f's_and_b32 s{sT0}, s{sWM}, 1')
    a(f's_lshl_b32 s{sT0}, s{sT0}, 2')
    a(f's_and_b32 s{sT1}, s{sWM}, 2')
    a(f's_lshl_b32 s{sT1}, s{sT1}, 3')
    a(f's_or_b32 s{sT0}, s{sT0}, s{sT1}')
    a(f'v_or_b32 v{vT+1}, s{sT0}, v{vT+1}')
    a(f'v_lshrrev_b32 v{vT+2}, 1, v{vT}')
    a(f'v_lshrrev_b32 v{vT+3}, 1, v{vL}')
    a(f'v_xor_b32 v{vT+2}, v{vT+2}, v{vT+3}')
    a(f'v_and_b32 v{vT+2}, 3, v{vT+2}')
    a(f'v_lshlrev_b32 v{vT+2}, 5, v{vT+2}')
    a(f'v_and_b32 v{vT+3}, 1, v{vL}')
    a(f'v_lshl_add_u32 v{vT+2}, v{vT+3}, 4, v{vT+2}')
    a(f'v_lshl_add_u32 v{vBoff}, v{vT+1}, 10, v{vT+2}')
    a(f'v_lshl_add_u32 v{vT+4}, v{vT}, 12, v{vT+2}')
    a('s_waitcnt lgkmcnt(0)')
    srd(a, sX, 4, 2048 * 1024)
    srd(a, sW, 8, 896 * 1024)
    srd(a, sWS, 6, WS_END)
    srd(a, sO, 10, 2048 * 1024)
    vm = VM()
    for s in range(7):
        for m in (2*s, 2*s+1):
            a(f's_add_u32 s{sT0}, s{sBoff}, {m * 65536}')
            a(f's_add_u32 m0, s{sMw}, {m * 8192}')
            a(f'buffer_load_dwordx4 v{vBoff}, {sr(sW,4)}, s{sT0} offen lds')
            vm.add('S%d' % s)
            a(f's_add_u32 s{sT1}, s{sAoff}, {m * 2048}')
            a(f'buffer_load_dwordx4 {vr(vA+4*m,4)}, v{vAoff}, {sr(sWS,4)}, s{sT1} offen')
            vm.add('S%d' % s)
    a(f's_lshl_b32 s{sT0}, s{sDB}, 6')
    a(f's_lshl_b32 s{sT1}, s{sWV}, 3')
    a(f's_add_u32 s{sT0}, s{sT0}, s{sT1}')
    a(f's_lshl_b32 s{sT0}, s{sT0}, 12')
    a(f's_lshl_b32 s{sT1}, s{sRB}, 7')
    a(f's_add_u32 s{sT0}, s{sT0}, s{sT1}')
    a(f's_add_u32 s{sT0}, s{sT0}, {WS_YT}')
    a(f's_add_u32 m0, s{sMw}, {L_Y}')
    a(f'buffer_load_dwordx4 v{vT+4}, {sr(sWS,4)}, s{sT0} offen lds'); vm.add('S6')
    a(f's_lshl_b32 s{sXo}, s{sRB}, 16')
    a(f's_lshl_b32 s{sT0}, s{sWV}, 13')
    a(f's_add_u32 s{sXo}, s{sXo}, s{sT0}')
    a(f's_lshl_b32 s{sT0}, s{sDB}, 7')
    a(f's_add_u32 s{sXo}, s{sXo}, s{sT0}')
    a(f'v_and_b32 v{vT+5}, 7, v{vL}')
    a(f'v_lshlrev_b32 v{vXoff}, 10, v{vT}')
    a(f'v_lshl_add_u32 v{vXoff}, v{vT+5}, 4, v{vXoff}')
    a(f'buffer_load_dwordx4 {vr(vX,4)}, v{vXoff}, {sr(sX,4)}, s{sXo} offen'); vm.add('E')
    vRr, vRw, vYr = V(), V(), V()
    a(f's_lshl_b32 s{sT0}, s{sWV}, 3')
    a(f'v_add_u32 v{vRr}, s{sT0}, v{vT}')
    a(f'v_mul_u32_u24 v{vRr}, {RP}, v{vRr}')
    a(f'v_lshl_add_u32 v{vRr}, v{vT+5}, 5, v{vRr}')
    a(f'v_add_u32 v{vRr}, {L_R}, v{vRr}')
    a(f's_lshl_b32 s{sT0}, s{sWV}, 4')
    a(f'v_add_u32 v{vRw}, s{sT0}, v{vI}')
    a(f'v_mul_u32_u24 v{vRw}, {RP}, v{vRw}')
    a(f'v_lshl_add_u32 v{vRw}, v{vG}, 4, v{vRw}')
    a(f'v_add_u32 v{vRw}, {L_R}, v{vRw}')
    a(f'v_lshrrev_b32 v{vT}, 2, v{vI}')
    a(f'v_lshl_add_u32 v{vT}, v{vG}, 2, v{vT}')
    a(f'v_bfe_u32 v{vT+1}, v{vT}, 1, 2')
    a(f'v_xor_b32 v{vT+1}, s{sWM}, v{vT+1}')
    a(f'v_lshlrev_b32 v{vYr}, 7, v{vT}')
    a(f'v_lshl_add_u32 v{vYr}, v{vT+1}, 5, v{vYr}')
    a(f'v_and_b32 v{vT+1}, 3, v{vI}')
    a(f'v_lshl_add_u32 v{vYr}, v{vT+1}, 3, v{vYr}')
    a(f's_lshl_b32 s{sT0}, s{sKH}, 12')
    a(f's_add_u32 s{sT0}, s{sT0}, {L_Y}')
    a(f'v_add_u32 v{vYr}, s{sT0}, v{vYr}')
    a(f'v_lshrrev_b32 v{vT}, 2, v{vI}')
    a(f'v_and_b32 v{vT+1}, 1, v{vG}')
    a(f'v_lshl_add_u32 v{vT}, v{vT+1}, 2, v{vT}')
    a(f'v_lshrrev_b32 v{vT+2}, 1, v{vT}')
    a(f'v_lshrrev_b32 v{vT+1}, 1, v{vG}')
    a(f'v_lshl_add_u32 v{vT}, v{vT+1}, 4, v{vT}')
    a(f'v_lshlrev_b32 v{vT}, 7, v{vT}')
    a(f'v_and_b32 v{vT+1}, 3, v{vI}')
    a(f'v_lshl_add_u32 v{vT}, v{vT+1}, 3, v{vT}')
    a(f's_lshl_b32 s{sT0}, s{sKH}, 12')
    a(f'v_add_u32 v{vT}, s{sT0}, v{vT}')
    for t in range(4):
        a(f'v_xor_b32 v{vT+3}, {t}, v{vT+2}')
        a(f'v_lshl_add_u32 v{vTr+t}, v{vT+3}, 5, v{vT}')
    def reads(m, bs):
        if m == 8:
            for t in range(4): a(f'v_add_u32 v{vTr+t}, 0x10000, v{vTr+t}')
        for t in range(4):
            for h in range(2):
                a(f'ds_read_b64_tr_b16 {vr(vB+16*bs+4*t+2*h,2)}, v{vTr+t} offset:{(m & 7) * 8192 + h*1024}')
    pf.stamp()
    for s in range(7):
        vm.wait(a, 'S%d' % s)
        a('s_barrier')
        if s in (0, 1, 6): pf.stamp()
        reads(2*s, 0)
        reads(2*s + 1, 1)
        if s == 6:
            a(f'ds_read_b64_tr_b16 {vr(vY,2)}, v{vYr}')
            a(f'ds_read_b64_tr_b16 {vr(vY+2,2)}, v{vYr} offset:2048')
        for c in range(2):
            m = 2*s + c
            a(f's_waitcnt lgkmcnt({(8 if c == 0 else 0) + (2 if s == 6 else 0)})')
            for t in range(4):
                cc = '0' if m == 0 else vr(vC+4*t, 4)
                a(f'v_mfma_f32_16x16x32_bf16 {vr(vC+4*t,4)}, {vr(vB+16*c+4*t,4)}, {vr(vA+4*m,4)}, {cc}')
    pf.stamp()
    a('s_waitcnt lgkmcnt(0)')
    for q in range(4):
        a(f'v_lshlrev_b32 v{vR+2*q}, 16, v{vY+q}')
        a(f'v_and_b32 v{vR+2*q+1}, 0xffff0000, v{vY+q}')
    a(f's_cmp_eq_u32 s{sKH}, 0')
    a.fence()
    a('s_cbranch_scc0 K3_Y1')
    for i in range(8): a(f'v_add_f32 v{vC+i}, v{vR+i}, v{vC+i}')
    a('s_branch K3_YD')
    a.label('K3_Y1')
    for i in range(8): a(f'v_add_f32 v{vC+8+i}, v{vR+i}, v{vC+8+i}')
    a.label('K3_YD')
    for t in range(4): a(f'ds_write_b128 v{vRw}, {vr(vC+4*t,4)} offset:{64*t}')
    a('s_waitcnt lgkmcnt(0)')
    a('s_barrier')
    for k in range(2):
        a(f'ds_read_b128 {vr(vR+8*k,4)}, v{vRr} offset:{64*RP*k}')
        a(f'ds_read_b128 {vr(vR+8*k+4,4)}, v{vRr} offset:{64*RP*k+16}')
    a('s_waitcnt vmcnt(0)')
    for q in range(4):
        a(f'v_lshlrev_b32 v{vC+2*q}, 16, v{vX+q}')
        a(f'v_and_b32 v{vC+2*q+1}, 0xffff0000, v{vX+q}')
    a('s_waitcnt lgkmcnt(0)')
    for i in range(8): a(f'v_add_f32 v{vR+i}, v{vR+i}, v{vR+8+i}')
    for i in range(8): a(f'v_add_f32 v{vR+i}, v{vR+i}, v{vC+i}')
    for q in range(4): a(f'v_cvt_pk_bf16_f32 v{vX+q}, v{vR+2*q}, v{vR+2*q+1}')
    a(f'buffer_store_dwordx4 {vr(vX,4)}, v{vXoff}, {sr(sO,4)}, s{sXo} offen')
    pf.stamp()
    pf.dump(6, sWV, vT)
    a.label('K3_END')
    a('s_endpgm')
    return dict(name=name, grid=256, block=512, lds=K3_LDS, vgpr=V.hi, sgpr=100 if PROFILE else 48)
```
